```python
import torch

def _softmax(x, axis=-1):
    return torch.softmax(x, dim=axis)
def _gelu(x):
    return torch.nn.functional.gelu(x, approximate="tanh")
def _silu(x):
    return torch.nn.functional.silu(x)
def _sigmoid(x):
    return torch.sigmoid(x)
def _layernorm(x, axis=-1, eps=1e-5):
    m = x.mean(dim=axis, keepdim=True)
    v = x.var(dim=axis, keepdim=True, unbiased=False)
    return (x - m) / torch.sqrt(v + eps)
def _scatter_add(tgt, idx, src, axis=0):
    return tgt.clone().index_add_(axis, idx, src)
def _segment_sum(src, seg, n):
    out = torch.zeros((n,) + src.shape[1:], dtype=src.dtype)
    return out.index_add_(0, seg, src)
def _pad(x, pw):
    flat = tuple(v for pair in reversed(pw) for v in pair)
    return torch.nn.functional.pad(x, flat)

kernel_name = 'concat_heads__mha_block_cached__mha_block_cached__near_ridge'

def setup_inputs():

    _w = (lambda a: (lambda t: t.to(torch.bfloat16) if t.is_floating_point() else t)(torch.as_tensor(a)))
    def _A_setup():
        B, Sq, D = 8, 208, 512
        H, Sk, Dh = 32, 512, 128
        return {
            "x": _w((lambda *s: torch.randn(*s, dtype=torch.bfloat16) * 0.8)(B, Sq, D)),
            "k_cache": _w((lambda *s: torch.randn(*s, dtype=torch.bfloat16) * 0.8)(B, H, Sk, Dh)),
            "v_cache": _w((lambda *s: torch.randn(*s, dtype=torch.bfloat16) * 0.05)(B, H, Sk, Dh)),
            "wq": _w((lambda *s: torch.randn(*s, dtype=torch.bfloat16) * 0.8)(D, H * Dh) * (D ** -0.5)),
            "wo": _w((lambda *s: torch.randn(*s, dtype=torch.bfloat16) * 0.05)(H * Dh, D) * ((H * Dh) ** -0.5)),
        }
    _A_in = _A_setup()

    def _B_setup():
        B, Sq, D = 8, 208, 512
        H, Sk, Dh = 32, 512, 128
        return {
            "x": _w((lambda *s: torch.randn(*s, dtype=torch.bfloat16) * 0.8)(B, Sq, D)),
            "k_cache": _w((lambda *s: torch.randn(*s, dtype=torch.bfloat16) * 0.8)(B, H, Sk, Dh)),
            "v_cache": _w((lambda *s: torch.randn(*s, dtype=torch.bfloat16) * 0.05)(B, H, Sk, Dh)),
            "wq": _w((lambda *s: torch.randn(*s, dtype=torch.bfloat16) * 0.8)(D, H * Dh) * (D ** -0.5)),
            "wo": _w((lambda *s: torch.randn(*s, dtype=torch.bfloat16) * 0.05)(H * Dh, D) * ((H * Dh) ** -0.5)),
        }
    _B_in = _B_setup()

    return {
        "A_x": _A_in["x"],
        "A_k_cache": _A_in["k_cache"],
        "A_v_cache": _A_in["v_cache"],
        "A_wq": _A_in["wq"],
        "A_wo": _A_in["wo"],
        "B_x": _B_in["x"],
        "B_k_cache": _B_in["k_cache"],
        "B_v_cache": _B_in["v_cache"],
        "B_wq": _B_in["wq"],
        "B_wo": _B_in["wo"],
    }

def reference(A_x, A_k_cache, A_v_cache, A_wq, A_wo, B_x, B_k_cache, B_v_cache, B_wq, B_wo):
    def _A_ref(x, k_cache, v_cache, wq, wo):
        B, Sq, D = x.shape
        H, Dh = 32, 128
        q = (lambda x, *d: x.permute(*d))((x @ wq).reshape(B, Sq, H, Dh), 0, 2, 1, 3)
        scores = torch.einsum("bhqd,bhkd->bhqk", q, k_cache) * (Dh ** -0.5)
        p = _softmax(scores, axis=-1)
        o = torch.einsum("bhqk,bhkd->bhqd", p, v_cache)
        return (lambda x, *d: x.permute(*d))(o, 0, 2, 1, 3).reshape(B, Sq, H * Dh) @ wo

    def _B_ref(x, k_cache, v_cache, wq, wo):
        B, Sq, D = x.shape
        H, Dh = 32, 128
        q = (lambda x, *d: x.permute(*d))((x @ wq).reshape(B, Sq, H, Dh), 0, 2, 1, 3)
        scores = torch.einsum("bhqd,bhkd->bhqk", q, k_cache) * (Dh ** -0.5)
        p = _softmax(scores, axis=-1)
        o = torch.einsum("bhqk,bhkd->bhqd", p, v_cache)
        return (lambda x, *d: x.permute(*d))(o, 0, 2, 1, 3).reshape(B, Sq, H * Dh) @ wo

    a = _A_ref(A_x, A_k_cache, A_v_cache, A_wq, A_wo)
    b = _B_ref(B_x, B_k_cache, B_v_cache, B_wq, B_wo)
    return torch.concatenate([a, b], axis=-1)
```

```python
import re

def vr(base, n=1):
    return f'v{base}' if n == 1 else f'v[{base}:{base+n-1}]'
def sr(base, n=1):
    return f's{base}' if n == 1 else f's[{base}:{base+n-1}]'

class I:
    __slots__ = ('text', 'kind', 'vw', 'vrd', 'sw', 'srd', 'cr', 'passes', 'label', 'store_data')
    def __init__(self, text, kind, vw=(), vrd=(), sw=(), srd=(), cr=(), passes=0, store_data=()):
        self.text = text; self.kind = kind
        self.vw = set(vw); self.vrd = set(vrd); self.sw = set(sw); self.srd = set(srd)
        self.cr = set(cr)
        self.passes = passes
        self.store_data = set(store_data)
        self.label = None

def rng(b, n): return list(range(b, b + n))

TRANS = ('v_exp_f32', 'v_log_f32', 'v_rcp_f32', 'v_rsq_f32', 'v_sqrt_f32')

class Asm:
    def __init__(self):
        self.ins = []
    def raw(self, text, kind='salu', **kw):
        self.ins.append(I(text, kind, **kw))
    def comment(self, t):
        self.ins.append(I('; ' + t, 'comment'))
    def label(self, name):
        i = I(name + ':', 'label'); i.label = name
        self.ins.append(i)
    @staticmethod
    def _regs(op):
        op = op.strip().lstrip('-')
        if op.startswith('abs('): op = op[4:-1]
        m = re.fullmatch(r'v(\d+)', op)
        if m: return [int(m.group(1))], []
        m = re.fullmatch(r'v\[(\d+):(\d+)\]', op)
        if m: return list(range(int(m.group(1)), int(m.group(2)) + 1)), []
        m = re.fullmatch(r's(\d+)', op)
        if m: return [], [int(m.group(1))]
        m = re.fullmatch(r's\[(\d+):(\d+)\]', op)
        if m: return [], list(range(int(m.group(1)), int(m.group(2)) + 1))
        if op == 'vcc': return [], ['vcc']
        if op == 'm0': return [], ['m0']
        if op == 'exec': return [], ['exec']
        return [], []
    def valu(self, op, dst, *srcs, mods='', rmw=False):
        vw, sw = self._regs(dst)
        vrd, srd = [], []
        for s in srcs:
            a, b = self._regs(str(s)); vrd += a; srd += b
        if rmw: vrd += vw
        kind = 'trans' if op in TRANS else 'valu'
        if op.startswith('v_cndmask') and len(srcs) == 2: srd.append('vcc')
        txt = f'{op} {dst}, ' + ', '.join(str(s) for s in srcs) + (' ' + mods if mods else '')
        self.ins.append(I(txt, kind, vw=vw, vrd=vrd, sw=sw, srd=srd))
    def permswap(self, op, a, b):
        self.ins.append(I(f'{op} v{a}, v{b}', 'perm', vw=[a, b], vrd=[a, b]))
    def readfirstlane(self, s, v):
        self.ins.append(I(f'v_readfirstlane_b32 s{s}, v{v}', 'rfl', sw=[s], vrd=[v]))
    def mfma16(self, d, a, b, c):
        if isinstance(c, int):
            ctxt = vr(c, 4); cr = rng(c, 4)
        else:
            ctxt = str(c); cr = []
        self.ins.append(I(f'v_mfma_f32_16x16x32_bf16 {vr(d,4)}, {vr(a,4)}, {vr(b,4)}, {ctxt}', 'mfma',
                          vw=rng(d, 4), vrd=rng(a, 4) + rng(b, 4), cr=cr, passes=4))
    def mfma32(self, d, a, b, c):
        if isinstance(c, int):
            ctxt = vr(c, 16); cr = rng(c, 16)
        else:
            ctxt = str(c); cr = []
        self.ins.append(I(f'v_mfma_f32_32x32x16_bf16 {vr(d,16)}, {vr(a,4)}, {vr(b,4)}, {ctxt}', 'mfma',
                          vw=rng(d, 16), vrd=rng(a, 4) + rng(b, 4), cr=cr, passes=8))
    def ds_read(self, op, d, n, addr, offset=0):
        assert 0 <= offset < 65536
        self.ins.append(I(f'{op} {vr(d,n)}, v{addr}' + (f' offset:{offset}' if offset else ''), 'ds',
                          vw=rng(d, n), vrd=[addr]))
    def ds_write(self, op, addr, s, n, offset=0):
        assert 0 <= offset < 65536
        self.ins.append(I(f'{op} v{addr}, {vr(s,n)}' + (f' offset:{offset}' if offset else ''), 'ds',
                          vrd=[addr] + rng(s, n)))
    def buf_load(self, d, n, voff, srd, soff, offset=0, mods=''):
        op = {1: 'buffer_load_dword', 2: 'buffer_load_dwordx2', 4: 'buffer_load_dwordx4'}[n]
        assert 0 <= offset < 4096
        so = f's{soff}' if isinstance(soff, int) else str(soff)
        self.ins.append(I(f'{op} {vr(d,n)}, v{voff}, {sr(srd,4)}, {so} offen' + (f' offset:{offset}' if offset else '') + (' ' + mods if mods else ''),
                          'vmem', vw=rng(d, n), vrd=[voff], srd=rng(srd, 4) + ([soff] if isinstance(soff, int) else [])))
    def buf_load_lds(self, voff, srd, soff, offset=0, mods=''):
        assert 0 <= offset < 4096
        so = f's{soff}' if isinstance(soff, int) else str(soff)
        self.ins.append(I(f'buffer_load_dwordx4 v{voff}, {sr(srd,4)}, {so} offen' + (f' offset:{offset}' if offset else '') + (' ' + mods if mods else '') + ' lds',
                          'dma', vrd=[voff], srd=rng(srd, 4) + ['m0'] + ([soff] if isinstance(soff, int) else [])))
    def buf_store(self, s, n, voff, srd, soff, offset=0, mods=''):
        op = {1: 'buffer_store_dword', 2: 'buffer_store_dwordx2', 4: 'buffer_store_dwordx4'}[n]
        assert 0 <= offset < 4096
        so = f's{soff}' if isinstance(soff, int) else str(soff)
        self.ins.append(I(f'{op} {vr(s,n)}, v{voff}, {sr(srd,4)}, {so} offen' + (f' offset:{offset}' if offset else '') + (' ' + mods if mods else ''),
                          'vmem', vrd=[voff] + rng(s, n), srd=rng(srd, 4) + ([soff] if isinstance(soff, int) else []),
                          store_data=rng(s, n) if n >= 3 else []))
    def salu(self, op, dst, *srcs):
        _, sw = self._regs(str(dst))
        srd = []
        for s in srcs:
            _, b = self._regs(str(s)); srd += b
        txt = f'{op} {dst}' + (', ' + ', '.join(str(s) for s in srcs) if srcs else '')
        self.ins.append(I(txt, 'salu', sw=sw, srd=srd))
    def scmp(self, op, a, b):
        srd = self._regs(str(a))[1] + self._regs(str(b))[1]
        self.ins.append(I(f'{op} {a}, {b}', 'salu', srd=srd))
    def branch(self, op, target):
        self.ins.append(I(f'{op} {target}', 'branch'))
    def wait(self, vm=None, lgkm=None):
        t = 's_waitcnt'
        if vm is not None: t += f' vmcnt({vm})'
        if lgkm is not None: t += f' lgkmcnt({lgkm})'
        self.ins.append(I(t, 'wait'))
    def barrier(self):
        self.ins.append(I('s_barrier', 'salu'))
    def nop(self, n):
        self.ins.append(I(f's_nop {n}', 'nop', passes=n + 1))

    def finalize(self):
        out = []
        hist = []
        slot = 0
        def need_for(ins):
            need = 0
            for (sl, p) in reversed(hist):
                dist = slot - sl - 1
                if dist > 24: break
                req = 0
                k = ins.kind
                isvalu = k in ('valu', 'trans', 'perm', 'rfl')
                pvalu = p.kind in ('valu', 'trans', 'perm', 'rfl')
                if p.kind == 'mfma':
                    base = {4: 8, 8: 12}[p.passes]
                    if k == 'mfma':
                        if p.vw & ins.vrd: req = max(req, base)
                        ov = p.vw & ins.cr
                        if ov:
                            if ins.cr == p.vw and ins.passes == p.passes: pass
                            else: req = max(req, {4: 6, 8: 10}[p.passes])
                        if (p.vw & ins.vw) and not (ins.cr == p.vw): req = max(req, base)
                    elif isvalu:
                        if p.vw & (ins.vrd | ins.vw): req = max(req, base)
                        if p.cr & ins.vw: req = max(req, {4: 3, 8: 7}[p.passes])
                    elif k in ('ds', 'vmem', 'dma'):
                        if p.vw & (ins.vrd | ins.vw): req = max(req, base)
                if pvalu:
                    if k == 'mfma' and (p.vw & (ins.vrd | ins.cr)): req = max(req, 2)
                    if k == 'perm' and (p.vw & ins.vrd): req = max(req, 2)
                    if k == 'rfl' and (p.vw & ins.vrd): req = max(req, 1)
                    if p.kind == 'trans' and k in ('valu', 'perm', 'rfl') and (p.vw & ins.vrd): req = max(req, 1)
                    if p.sw:
                        if isvalu and (p.sw & ins.srd): req = max(req, 2)
                        if k in ('vmem', 'dma') and (p.sw & ins.srd): req = max(req, 5)
                        if k in ('salu', 'branch') and (p.sw & ins.srd): req = max(req, 1)
                        if k == 'branch' and 'vcc' in p.sw and 'vcc' in ins.text: req = max(req, 2)
                if p.kind == 'salu' and 'm0' in p.sw and k == 'dma': req = max(req, 1)
                if p.store_data and (p.store_data & ins.vw): req = max(req, 2)
                need = max(need, req - dist)
            return need
        for ins in self.ins:
            if ins.kind == 'comment':
                out.append(ins); continue
            if ins.kind == 'label':
                out.append(ins); continue
            n = need_for(ins)
            while n > 0:
                k = min(n, 16)
                nop = I(f's_nop {k-1}', 'nop', passes=k)
                out.append(nop); hist.append((slot + k - 1, nop)); slot += k
                n -= k
            out.append(ins)
            if ins.kind == 'nop':
                hist.append((slot + ins.passes - 1, ins)); slot += ins.passes
            elif ins.kind == 'branch':
                pass
            else:
                hist.append((slot, ins)); slot += 1
            if len(hist) > 64: hist = hist[-40:]
        return out
    def text(self):
        lines = []
        for i in self.finalize():
            if i.kind == 'label': lines.append(i.text)
            else: lines.append('    ' + i.text)
        return '\n'.join(lines)
```

```python
from dsl import *
import math

NB = 6
THR = 0x49800000

def gen_k1(name):
    a = Asm()
    O = lambda t, dt: (t * 8 + dt) * 4
    Q = lambda t, p: 128 + (t * 4 + p) * 4
    S = lambda t, kt: 176 + (t * 2 + kt) * 4
    F = lambda i: 200 + i * 4
    XB = lambda buf, t: 104 + (buf * 4 + t) * 4
    QACC = lambda t, i: (t * 8 + i) * 4
    QACCL = lambda i: 96 + i * 4
    vM = [232, 233, 234, 235]
    vL = [236, 237, 238, 239]
    vKA = [240, 241, 242, 243]
    vVA = 244
    vKD = 245
    vVD = 246
    vT = [247, 248, 249, 250, 251, 252]
    vLane16 = 253
    vXO = 254
    vWA = 255
    vWD = 232
    vKD1 = 233
    vVD1 = 234
    vKD0 = 235
    vVD0 = 236
    sK, sV, sW, sX, sO = 8, 12, 16, 20, 24
    sWv = 28
    sFlagM, sFlagL = 29, 30
    sKVoff = 31
    sM0b = 32
    sThr = 33
    sRet = 34
    sCnt = 36
    sT0, sT1, sT2 = 37, 38, 39
    sXt = [40, 41, 42, 43]
    sWoff = 44
    sB = 45
    sScale = 46

    a.scmp('s_cmp_ge_u32', 's2', 512)
    a.branch('s_cbranch_scc1', f'{name}_done')
    a.salu('s_lshr_b32', f's{sT0}', 's2', 8)
    a.salu('s_mul_i32', f's{sT1}', f's{sT0}', 40)
    a.salu('s_add_u32', 's4', 's0', f's{sT1}')
    a.salu('s_addc_u32', 's5', 's1', 0)
    a.raw('s_load_dwordx8 s[48:55], s[4:5], 0', sw=list(range(48, 56)))
    a.raw('s_load_dwordx2 s[56:57], s[0:1], 96', sw=[56, 57])
    a.salu('s_and_b32', f's{sT1}', 's2', 255)
    a.salu('s_lshr_b32', f's{sB}', f's{sT1}', 5)
    a.salu('s_and_b32', f's{sT2}', f's{sT1}', 31)
    vl, vg, vi, vr_, vc = vT[0], vT[1], vT[2], vT[3], vT[4]
    a.valu('v_lshrrev_b32', f'v{vT[5]}', 6, 'v0')
    a.readfirstlane(sWv, vT[5])
    a.valu('v_and_b32', f'v{vl}', 63, 'v0')
    a.valu('v_lshrrev_b32', f'v{vg}', 4, f'v{vl}')
    a.valu('v_and_b32', f'v{vi}', 15, f'v{vl}')
    a.valu('v_lshrrev_b32', f'v{vr_}', 2, f'v{vi}')
    a.valu('v_and_b32', f'v{vc}', 3, f'v{vi}')
    a.valu('v_lshlrev_b32', f'v{vLane16}', 4, f'v{vl}')
    a.wait(lgkm=0)
    a.salu('s_mul_i32', 's58', f's{sB}', 212992)
    a.salu('s_add_u32', f's{sX}', 's48', 's58'); a.salu('s_addc_u32', f's{sX+1}', 's49', 0)
    a.salu('s_mov_b32', f's{sX+2}', 212992); a.salu('s_mov_b32', f's{sX+3}', 0x00020000)
    a.salu('s_lshl_b32', 's58', f's{sT1}', 17)
    a.salu('s_add_u32', f's{sK}', 's50', 's58'); a.salu('s_addc_u32', f's{sK+1}', 's51', 0)
    a.salu('s_mov_b32', f's{sK+2}', 131072); a.salu('s_mov_b32', f's{sK+3}', 0x00020000)
    a.salu('s_add_u32', f's{sV}', 's52', 's58'); a.salu('s_addc_u32', f's{sV+1}', 's53', 0)
    a.salu('s_mov_b32', f's{sV+2}', 131072); a.salu('s_mov_b32', f's{sV+3}', 0x00020000)
    a.salu('s_lshl_b32', 's58', f's{sT2}', 8)
    a.salu('s_add_u32', f's{sW}', 's54', 's58'); a.salu('s_addc_u32', f's{sW+1}', 's55', 0)
    a.salu('s_sub_u32', f's{sW+2}', 4194304, 's58'); a.salu('s_mov_b32', f's{sW+3}', 0x00020000)
    a.salu('s_lshl_b32', 's58', f's{sT0}', 3)
    a.salu('s_add_u32', 's58', 's58', f's{sB}')
    a.salu('s_mul_i32', 's58', 's58', 13 * 128 * 1024)
    a.salu('s_lshl_b32', 's59', f's{sT2}', 12)
    a.salu('s_add_u32', 's58', 's58', 's59')
    a.salu('s_add_u32', f's{sO}', 's56', 's58'); a.salu('s_addc_u32', f's{sO+1}', 's57', 0)
    a.salu('s_mov_b32', f's{sO+2}', 12 * 131072 + 4096); a.salu('s_mov_b32', f's{sO+3}', 0x00020000)
    a.salu('s_mov_b32', f's{sThr}', THR)
    a.salu('s_mov_b32', f's{sFlagM}', 1); a.salu('s_mov_b32', f's{sFlagL}', 1)
    a.salu('s_lshl_b32', f's{sM0b}', f's{sWv}', 10)
    a.salu('s_add_u32', f's{sM0b}', f's{sM0b}', 16384)
    a.salu('s_mul_i32', f's{sXt[0]}', f's{sWv}', 3 * 16384)
    a.salu('s_add_u32', f's{sXt[1]}', f's{sXt[0]}', 16384)
    a.salu('s_add_u32', f's{sXt[2]}', f's{sXt[0]}', 32768)
    a.salu('s_mov_b32', f's{sXt[3]}', 12 * 16384)
    import struct
    cs = struct.unpack('<I', struct.pack('<f', math.log2(math.e) / math.sqrt(128.0)))[0]
    a.salu('s_mov_b32', f's{sScale}', hex(cs))
    a.valu('v_lshlrev_b32', f'v{vXO}', 10, f'v{vi}')
    a.valu('v_lshl_add_u32', f'v{vXO}', f'v{vg}', 4, f'v{vXO}')
    a.valu('v_xor_b32', f'v{vKD}', f'v{vi}', f'v{vg}')
    a.valu('v_lshlrev_b32', f'v{vKD}', 4, f'v{vKD}')
    a.valu('v_lshl_add_u32', f'v{vKD}', f'v{vg}', 8, f'v{vKD}')
    a.valu('v_lshlrev_b32', f'v{vVD}', 1, f'v{vg}')
    a.valu('v_xor_b32', f'v{vVD}', f'v{vi}', f'v{vVD}')
    a.valu('v_lshlrev_b32', f'v{vVD}', 4, f'v{vVD}')
    a.valu('v_lshl_add_u32', f'v{vVD}', f'v{vg}', 8, f'v{vVD}')
    a.salu('s_and_b32', f's{sT0}', f's{sWv}', 1)
    a.salu('s_lshl_b32', f's{sT0}', f's{sT0}', 2)
    a.valu('v_or_b32', f'v{vWD}', f's{sT0}', f'v{vg}')
    a.valu('v_lshlrev_b32', f'v{vWD}', 1, f'v{vWD}')
    a.valu('v_xor_b32', f'v{vWD}', f'v{vi}', f'v{vWD}')
    a.valu('v_lshlrev_b32', f'v{vWD}', 4, f'v{vWD}')
    a.valu('v_lshl_add_u32', f'v{vWD}', f'v{vg}', 13, f'v{vWD}')
    t5 = vT[5]
    a.valu('v_and_b32', f'v{t5}', 1, f'v{vg}')
    a.valu('v_lshl_add_u32', f'v{t5}', f'v{t5}', 2, f'v{vr_}')
    a.salu('s_lshl_b32', f's{sT0}', f's{sWv}', 1)
    a.valu('v_xor_b32', f'v{vWA}', f's{sT0}', f'v{t5}')
    a.valu('v_lshlrev_b32', f'v{vWA}', 5, f'v{vWA}')
    a.valu('v_lshl_add_u32', f'v{vWA}', f'v{vc}', 3, f'v{vWA}')
    a.valu('v_lshl_add_u32', f'v{vWA}', f'v{vr_}', 8, f'v{vWA}')
    a.valu('v_lshl_add_u32', f'v{vWA}', f'v{vg}', 11, f'v{vWA}')
    a.valu('v_lshlrev_b32', f'v{vVA}', 5, f'v{t5}')
    a.valu('v_lshl_add_u32', f'v{vVA}', f'v{vc}', 3, f'v{vVA}')
    a.valu('v_lshl_add_u32', f'v{vVA}', f'v{vr_}', 8, f'v{vVA}')
    a.valu('v_lshl_add_u32', f'v{vVA}', f'v{vg}', 10, f'v{vVA}')
    a.valu('v_add_u32', f'v{vVA}', 16384 + 8192, f'v{vVA}')
    a.valu('v_xor_b32', f'v{t5}', f'v{vg}', f'v{vi}')
    a.salu('s_lshl_b32', f's{sT0}', f's{sWv}', 2)
    a.valu('v_xor_b32', f'v{t5}', f's{sT0}', f'v{t5}')
    a.valu('v_lshlrev_b32', f'v{t5}', 4, f'v{t5}')
    a.valu('v_lshl_add_u32', f'v{t5}', f'v{vi}', 8, f'v{t5}')
    a.valu('v_add_u32', f'v{vKA[0]}', 16384, f'v{t5}')
    for p in range(1, 4):
        a.valu('v_xor_b32', f'v{vKA[p]}', p * 64, f'v{vKA[0]}')

    a.scmp('s_cmp_ge_u32', f's{sWv}', 2)
    a.branch('s_cbranch_scc1', f'{name}_p1_kv')

    def phase1(role):
        q = []
        def issue(tag): q.append(tag)
        def waitfor(tags):
            last = max(i for i, t in enumerate(q) if t in tags)
            return len(q) - 1 - last
        def xloads(s):
            for t in range(4):
                a.buf_load(XB(s % NB, t), 4, vXO, sX, sXt[t], offset=s * 64)
                issue(('x', s))
        def wdma(s):
            for k, nn in enumerate((0, 1, 4, 5)):
                a.salu('s_add_u32', 'm0', f's{sT1}', (s & 1) * 8192 + nn * 1024)
                a.salu('s_add_u32', f's{sT0}', f's{sWoff}', (32 * s + 4 * nn) * 8192)
                a.buf_load_lds(vWD, sW, sT0)
                issue(('w', s))
        kvlist = []
        for blk in range(4):
            for kv in range(2):
                for nn in (0, 1, 4, 5):
                    kvlist.append((blk, kv, nn))
        def kvdma(cnt):
            for _ in range(cnt):
                if not kvlist: return
                blk, kv, nn = kvlist.pop(0)
                a.salu('s_add_u32', 'm0', f's{sT1}', 16384 + blk * 16384 + kv * 8192 + nn * 1024)
                a.salu('s_add_u32', f's{sT0}', f's{sT1}', blk * 8192 + nn * 1024)
                if kv == 0:
                    a.buf_load_lds(vKD0 if (nn & 1) == 0 else vKD1, sK, sT0, mods='nt')
                else:
                    a.buf_load_lds(vVD0 if (nn & 1) == 0 else vVD1, sV, sT0, mods='nt')
                issue(('kv', blk))
        if role == 'w':
            a.salu('s_lshl_b32', f's{sT1}', f's{sWv}', 11)
            a.salu('s_lshl_b32', f's{sWoff}', f's{sWv}', 16)
            a.salu('s_lshl_b32', f's{sT0}', f's{sB}', 19)
            a.salu('s_lshl_b32', f's{sT2}', f's{sWv}', 18)
            a.salu('s_add_u32', f's{sT0}', f's{sT0}', f's{sT2}')
            for k in range(8):
                a.buf_load(k * 4, 4, vWD, sW, sT0)
                issue(('warm', 0))
                if k < 7: a.salu('s_add_u32', f's{sT0}', f's{sT0}', 4 * 8192)
            wdma(0)
        else:
            a.salu('s_sub_u32', f's{sT1}', f's{sWv}', 2)
            a.salu('s_lshl_b32', f's{sT2}', f's{sT1}', 7)
            a.salu('s_lshl_b32', f's{sT1}', f's{sT1}', 11)
            a.valu('v_xor_b32', f'v{vKD0}', f's{sT2}', f'v{vKD}')
            a.valu('v_xor_b32', f'v{vKD1}', 64, f'v{vKD0}')
            a.valu('v_mov_b32', f'v{vVD0}', f'v{vVD}')
            a.valu('v_xor_b32', f'v{vVD1}', 128, f'v{vVD}')
        for s in range(NB - 1): xloads(s)
        if role == 'kv': kvdma(4)
        for s in range(16):
            a.comment(f'phase1 stage {s} role {role}')
            tags = [('x', s)] + ([('w', s)] if role == 'w' else [])
            a.wait(vm=waitfor(tags))
            a.barrier()
            if role == 'w':
                if s + 1 < 16: wdma(s + 1)
            else:
                kvdma(2)
            if s + NB - 1 < 16: xloads(s + NB - 1)
            for i in range(8):
                ad = vWA
                if i:
                    ad = vT[i % 4]
                    a.valu('v_xor_b32', f'v{ad}', i << 5, f'v{vWA}')
                a.ds_read('ds_read_b64_tr_b16', F(i), 2, ad, (s & 1) * 8192)
                a.ds_read('ds_read_b64_tr_b16', F(i) + 2, 2, ad, (s & 1) * 8192 + 1024)
            for i in range(8):
                a.wait(lgkm=14 - 2 * i)
                for t in range(3):
                    a.mfma16(QACC(t, i), F(i), XB(s % NB, t), QACC(t, i) if s else '0')
                if i < 2:
                    a.mfma16(QACCL(i), F(i), XB(s % NB, 3), QACCL(i) if s else '0')
        assert role == 'w' or not kvlist
        return q

    phase1('w')
    a.branch('s_branch', f'{name}_p1_end')
    a.label(f'{name}_p1_kv')
    phase1('kv')
    a.label(f'{name}_p1_end')
    a.nop(7)
    def qfrag(dst, accA, accB):
        for e in range(4):
            a.valu('v_mul_f32', f'v{accA+e}', f's{sScale}', f'v{accA+e}')
            a.valu('v_mul_f32', f'v{accB+e}', f's{sScale}', f'v{accB+e}')
        a.valu('v_cvt_pk_bf16_f32', f'v{dst}', f'v{accA}', f'v{accA+1}')
        a.valu('v_cvt_pk_bf16_f32', f'v{dst+1}', f'v{accA+2}', f'v{accA+3}')
        a.valu('v_cvt_pk_bf16_f32', f'v{dst+2}', f'v{accB}', f'v{accB+1}')
        a.valu('v_cvt_pk_bf16_f32', f'v{dst+3}', f'v{accB+2}', f'v{accB+3}')
        a.permswap('v_permlane32_swap_b32', dst, dst + 2)
        a.permswap('v_permlane32_swap_b32', dst + 1, dst + 3)
        a.permswap('v_permlane16_swap_b32', dst, dst + 2)
        a.permswap('v_permlane16_swap_b32', dst + 1, dst + 3)
    for t in range(3):
        for p in range(4):
            qfrag(Q(t, p), QACC(t, 2 * p), QACC(t, 2 * p + 1))
    qfrag(S(0, 0), QACCL(0), QACCL(1))
    a.salu('s_lshl_b32', f's{sT0}', f's{sWv}', 10)
    a.valu('v_add_u32', f'v{vT[0]}', f's{sT0}', f'v{vLane16}')
    a.ds_write('ds_write_b128', vT[0], S(0, 0), 4)
    a.salu('s_and_b32', f's{sT0}', f's{sWv}', 1)
    a.salu('s_lshl_b32', f's{sT1}', f's{sWv}', 6)
    a.valu('v_xor_b32', f'v{vKD}', f's{sT1}', f'v{vKD}')
    a.salu('s_lshl_b32', f's{sT1}', f's{sT0}', 7)
    a.valu('v_xor_b32', f'v{vVD}', f's{sT1}', f'v{vVD}')
    for r in range(128):
        a.valu('v_mov_b32', f'v{r}', 0)
    for t in range(4):
        a.valu('v_mov_b32', f'v{vM[t]}', '0xff800000')
        a.valu('v_mov_b32', f'v{vL[t]}', 0)
    a.salu('s_lshl_b32', f's{sKVoff}', f's{sWv}', 10)
    a.salu('s_add_u32', f's{sKVoff}', f's{sKVoff}', 4 * 8192)

    rare = []
    def softmax_pass(tag, slot, tiles, left):
        flag = sFlagL if left else sFlagM
        a.label(f'{name}_retry_{tag}')
        nq = 0
        if left:
            for p in range(4):
                a.ds_read('ds_read_b128', tiles[0][3](p), 4, vLane16, ((p ^ slot) << 10))
        for kt in range(2):
            for p in range(4):
                a.ds_read('ds_read_b128', F(kt * 4 + p), 4, vKA[p], slot * 16384 + kt * 4096)
        for kt in range(2):
            for p in range(4):
                a.wait(lgkm=7 - (kt * 4 + p))
                for (o, s0, s1, qf, m, l) in tiles:
                    sd = s0 if kt == 0 else s1
                    a.mfma16(sd, F(kt * 4 + p), qf(p), sd if p else '0')
        a.scmp('s_cmp_lg_u32', f's{flag}', 0)
        a.branch('s_cbranch_scc0', f'{name}_cont_{tag}')
        a.raw(f's_call_b64 s[{sRet}:{sRet+1}], {name}_fix_{"l" if left else "m"}', kind='branch')
        a.label(f'{name}_cont_{tag}')
        for dt in range(8):
            ad = vVA
            if dt:
                ad = vT[dt % 4]
                a.valu('v_xor_b32', f'v{ad}', dt << 5, f'v{vVA}')
            a.ds_read('ds_read_b64_tr_b16', F(dt), 2, ad, slot * 16384)
            a.ds_read('ds_read_b64_tr_b16', F(dt) + 2, 2, ad, slot * 16384 + 4096)
        sums = []
        for ti, (o, s0, s1, qf, m, l) in enumerate(tiles):
            regs = [s0 + e for e in range(4)] + [s1 + e for e in range(4)]
            for r in regs: a.valu('v_sub_f32', f'v{r}', f'v{r}', f'v{m}')
            for r in regs: a.valu('v_exp_f32', f'v{r}', f'v{r}')
            ts = vT[ti]; t2 = vT[4]
            a.valu('v_add_f32', f'v{ts}', f'v{regs[0]}', f'v{regs[1]}')
            a.valu('v_add_f32', f'v{t2}', f'v{regs[2]}', f'v{regs[3]}')
            a.valu('v_add_f32', f'v{ts}', f'v{ts}', f'v{regs[4]}')
            a.valu('v_add_f32', f'v{t2}', f'v{t2}', f'v{regs[5]}')
            a.valu('v_add_f32', f'v{ts}', f'v{ts}', f'v{regs[6]}')
            a.valu('v_add_f32', f'v{t2}', f'v{t2}', f'v{regs[7]}')
            a.valu('v_add_f32', f'v{ts}', f'v{ts}', f'v{t2}')
            sums.append(ts)
        if len(sums) == 3:
            a.valu('v_max3_f32', f'v{vT[5]}', f'v{sums[0]}', f'v{sums[1]}', f'v{sums[2]}')
            chk = vT[5]
        else:
            chk = sums[0]
        a.valu('v_cmp_lt_f32', 'vcc', f's{sThr}', f'v{chk}')
        a.branch('s_cbranch_vccnz', f'{name}_rare_{tag}')
        rare.append((tag, flag))
        for ti, (o, s0, s1, qf, m, l) in enumerate(tiles):
            a.valu('v_add_f32', f'v{l}', f'v{l}', f'v{sums[ti]}')
            a.valu('v_cvt_pk_bf16_f32', f'v{s0}', f'v{s0}', f'v{s0+1}')
            a.valu('v_cvt_pk_bf16_f32', f'v{s0+1}', f'v{s0+2}', f'v{s0+3}')
            a.valu('v_cvt_pk_bf16_f32', f'v{s0+2}', f'v{s1}', f'v{s1+1}')
            a.valu('v_cvt_pk_bf16_f32', f'v{s0+3}', f'v{s1+2}', f'v{s1+3}')
        for dt in range(8):
            a.wait(lgkm=14 - 2 * dt)
            for (o, s0, s1, qf, m, l) in tiles:
                a.mfma16(O(o, dt), F(dt), s0, O(o, dt))

    main_tiles = [(t, S(t, 0), S(t, 1), (lambda p, t=t: Q(t, p)), vM[t], vL[t]) for t in range(3)]
    left_tiles = [(3, S(0, 0), S(0, 1), (lambda p: S(1, 0) + 4 * p), vM[3], vL[3])]

    def stage(tag, slot, vmw, dma):
        a.comment(f'phase2 stage {tag}')
        a.wait(vm=vmw, lgkm=0)
        a.barrier()
        if dma:
            ps = (slot + 3) % 4
            a.salu('s_add_u32', 'm0', f's{sM0b}', ps * 16384)
            a.salu('s_add_u32', f's{sT0}', f's{sKVoff}', 4096)
            a.buf_load_lds(vKD, sK, sKVoff, mods='nt')
            a.salu('s_add_u32', 'm0', f's{sM0b}', ps * 16384 + 4096)
            a.nop(0)
            a.buf_load_lds(vKD, sK, sT0, mods='nt')
            a.salu('s_add_u32', 'm0', f's{sM0b}', ps * 16384 + 8192)
            a.nop(0)
            a.buf_load_lds(vVD, sV, sKVoff, mods='nt')
            a.salu('s_add_u32', 'm0', f's{sM0b}', ps * 16384 + 8192 + 4096)
            a.nop(0)
            a.buf_load_lds(vVD, sV, sT0, mods='nt')
            a.salu('s_add_u32', f's{sKVoff}', f's{sKVoff}', 8192)
        softmax_pass(f'm{tag}', slot, main_tiles, False)
        a.scmp('s_cmp_eq_u32', f's{sWv}', slot)
        a.branch('s_cbranch_scc0', f'{name}_skipl_{tag}')
        softmax_pass(f'l{tag}', slot, left_tiles, True)
        a.nop(7)
        a.label(f'{name}_skipl_{tag}')

    for j, vmw in enumerate((24, 16, 12, 8)):
        stage(f'p{j}', j, vmw, j >= 1)
    a.salu('s_mov_b32', f's{sCnt}', 0)
    a.label(f'{name}_loop')
    for j in range(4):
        stage(f'q{j}', j, 8, True)
    a.salu('s_add_u32', f's{sCnt}', f's{sCnt}', 1)
    a.scmp('s_cmp_lt_u32', f's{sCnt}', 3)
    a.branch('s_cbranch_scc1', f'{name}_loop')

    a.wait(vm=0)
    a.nop(7)
    def xreduce(op, reg):
        t = vT[0]
        a.valu('v_mov_b32', f'v{t}', f'v{reg}')
        a.permswap('v_permlane32_swap_b32', reg, t)
        a.valu(op, f'v{reg}', f'v{reg}', f'v{t}')
        a.valu('v_mov_b32', f'v{t}', f'v{reg}')
        a.permswap('v_permlane16_swap_b32', reg, t)
        a.valu(op, f'v{reg}', f'v{reg}', f'v{t}')
    for t in range(4): xreduce('v_add_f32', vL[t])
    a.valu('v_and_b32', f'v{vT[1]}', 0xf0, f'v{vLane16}')
    a.valu('v_lshrrev_b32', f'v{vT[1]}', 1, f'v{vT[1]}')
    a.salu('s_lshl_b32', f's{sT0}', f's{sWv}', 7)
    a.valu('v_add_u32', f'v{vT[2]}', f's{sT0}', f'v{vT[1]}')
    a.valu('v_mov_b32', f'v{S(2,0)}', f'v{vM[3]}')
    a.valu('v_mov_b32', f'v{S(2,0)+1}', f'v{vL[3]}')
    a.ds_write('ds_write_b64', vT[2], S(2, 0), 2, 8192)
    a.salu('s_mul_i32', f's{sT1}', f's{sWv}', 3 * 131072)
    for t in range(3):
        a.valu('v_rcp_f32', f'v{vL[t]}', f'v{vL[t]}')
        for p in range(4):
            A, B = O(t, 2 * p), O(t, 2 * p + 1)
            for e in range(4):
                a.valu('v_mul_f32', f'v{A+e}', f'v{A+e}', f'v{vL[t]}')
                a.valu('v_mul_f32', f'v{B+e}', f'v{B+e}', f'v{vL[t]}')
            a.valu('v_cvt_pk_bf16_f32', f'v{A}', f'v{A}', f'v{A+1}')
            a.valu('v_cvt_pk_bf16_f32', f'v{A+1}', f'v{A+2}', f'v{A+3}')
            a.valu('v_cvt_pk_bf16_f32', f'v{A+2}', f'v{B}', f'v{B+1}')
            a.valu('v_cvt_pk_bf16_f32', f'v{A+3}', f'v{B+2}', f'v{B+3}')
            a.buf_store(A, 4, vLane16, sO, sT1, offset=p * 1024)
        if t < 2: a.salu('s_add_u32', f's{sT1}', f's{sT1}', 131072)
    a.wait(lgkm=0)
    a.barrier()
    st = S(0, 0)
    for w in range(4):
        a.ds_read('ds_read_b64', st + 2 * w, 2, vT[1], 8192 + w * 128)
    a.wait(lgkm=0)
    mx = vT[2]
    a.valu('v_max3_f32', f'v{mx}', f'v{st}', f'v{st+2}', f'v{st+4}')
    a.valu('v_max_f32', f'v{mx}', f'v{mx}', f'v{st+6}')
    Lr = vT[3]
    for w in range(4):
        a.valu('v_sub_f32', f'v{st+2*w}', f'v{st+2*w}', f'v{mx}')
        a.valu('v_exp_f32', f'v{st+2*w}', f'v{st+2*w}')
    a.valu('v_mul_f32', f'v{Lr}', f'v{st}', f'v{st+1}')
    for w in range(1, 4):
        a.valu('v_fma_f32', f'v{Lr}', f'v{st+2*w}', f'v{st+2*w+1}', f'v{Lr}')
    a.valu('v_rcp_f32', f'v{Lr}', f'v{Lr}')
    a.valu('v_sub_f32', f'v{vT[4]}', f'v{vM[3]}', f'v{mx}')
    a.valu('v_exp_f32', f'v{vT[4]}', f'v{vT[4]}')
    a.valu('v_mul_f32', f'v{vT[4]}', f'v{vT[4]}', f'v{Lr}')
    a.salu('s_lshl_b32', f's{sT0}', f's{sWv}', 13)
    a.valu('v_add_u32', f'v{vT[5]}', f's{sT0}', f'v{vLane16}')
    for dt in range(8):
        for e in range(4):
            a.valu('v_mul_f32', f'v{O(3,dt)+e}', f'v{O(3,dt)+e}', f'v{vT[4]}')
        a.ds_write('ds_write_b128', vT[5], O(3, dt), 4, 16384 + dt * 1024)
    a.wait(lgkm=0)
    a.barrier()
    a.salu('s_lshl_b32', f's{sT0}', f's{sWv}', 11)
    a.valu('v_add_u32', f'v{vT[5]}', f's{sT0}', f'v{vLane16}')
    for w in range(4):
        for d in range(2):
            a.ds_read('ds_read_b128', F(w * 2 + d), 4, vT[5], 16384 + w * 8192 + d * 1024)
    a.wait(lgkm=0)
    for d in range(2):
        for e in range(4):
            a.valu('v_add_f32', f'v{F(d)+e}', f'v{F(d)+e}', f'v{F(2+d)+e}')
            a.valu('v_add_f32', f'v{F(4+d)+e}', f'v{F(4+d)+e}', f'v{F(6+d)+e}')
            a.valu('v_add_f32', f'v{F(d)+e}', f'v{F(d)+e}', f'v{F(4+d)+e}')
    A, B = F(0), F(1)
    a.valu('v_cvt_pk_bf16_f32', f'v{A}', f'v{A}', f'v{A+1}')
    a.valu('v_cvt_pk_bf16_f32', f'v{A+1}', f'v{A+2}', f'v{A+3}')
    a.valu('v_cvt_pk_bf16_f32', f'v{A+2}', f'v{B}', f'v{B+1}')
    a.valu('v_cvt_pk_bf16_f32', f'v{A+3}', f'v{B+2}', f'v{B+3}')
    a.salu('s_lshl_b32', f's{sT0}', f's{sWv}', 10)
    a.salu('s_add_u32', f's{sT0}', f's{sT0}', 12 * 131072)
    a.buf_store(A, 4, vLane16, sO, sT0)
    a.label(f'{name}_done')
    a.raw('s_endpgm')

    for (tag, flag) in rare:
        a.label(f'{name}_rare_{tag}')
        a.salu('s_mov_b32', f's{flag}', 1)
        a.wait(lgkm=0)
        a.nop(7)
        a.branch('s_branch', f'{name}_retry_{tag}')
    def fix(lbl, tiles, flag):
        a.label(f'{name}_fix_{lbl}')
        a.nop(7); a.nop(3)
        for (o, s0, s1, qf, m, l) in tiles:
            mxr = vT[1]
            a.valu('v_max3_f32', f'v{mxr}', f'v{s0}', f'v{s0+1}', f'v{s0+2}')
            a.valu('v_max3_f32', f'v{mxr}', f'v{mxr}', f'v{s0+3}', f'v{s1}')
            a.valu('v_max3_f32', f'v{mxr}', f'v{mxr}', f'v{s1+1}', f'v{s1+2}')
            a.valu('v_max3_f32', f'v{mxr}', f'v{mxr}', f'v{s1+3}', f'v{m}')
            xreduce('v_max_f32', mxr)
            a.valu('v_sub_f32', f'v{vT[2]}', f'v{m}', f'v{mxr}')
            a.valu('v_exp_f32', f'v{vT[2]}', f'v{vT[2]}')
            a.valu('v_mov_b32', f'v{m}', f'v{mxr}')
            a.valu('v_mul_f32', f'v{l}', f'v{l}', f'v{vT[2]}')
            for dt in range(8):
                for e in range(4):
                    a.valu('v_mul_f32', f'v{O(o,dt)+e}', f'v{O(o,dt)+e}', f'v{vT[2]}')
        a.salu('s_mov_b32', f's{flag}', 0)
        a.nop(3)
        a.raw(f's_setpc_b64 s[{sRet}:{sRet+1}]', kind='branch')
    fix('m', main_tiles, sFlagM)
    fix('l', left_tiles, sFlagL)
    return a.text()
```

```python
from dsl import *

def gen_k2(name):
    a = Asm()
    ACC = lambda t, nt: (t * 4 + nt) * 4
    OB = lambda buf, ks, t: 32 + ((buf * 4 + ks) * 2 + t) * 4
    F = lambda i: 160 + i * 4
    vA = [192, 193, 194, 195]
    vLane16 = 196
    vWD = 197
    vOO = 198
    vT = [199, 200, 201, 202, 203, 204]
    sWo, sOs, sOut = 8, 12, 16
    sWv = 20
    sT0, sT1, sT2, sT3 = 21, 22, 23, 24
    sM0b = 25
    sWoff = 26
    sOoff = [27, 28]
    sCnt = 29

    a.scmp('s_cmp_ge_u32', 's2', 256)
    a.branch('s_cbranch_scc1', f'{name}_done')
    a.salu('s_and_b32', f's{sT0}', 's2', 7)
    a.salu('s_lshr_b32', f's{sT1}', 's2', 3)
    a.salu('s_lshr_b32', 's30', f's{sT0}', 2)
    a.salu('s_and_b32', f's{sT0}', f's{sT0}', 3)
    a.salu('s_lshl_b32', f's{sT0}', f's{sT0}', 2)
    a.salu('s_and_b32', f's{sT2}', f's{sT1}', 3)
    a.salu('s_add_u32', 's31', f's{sT0}', f's{sT2}')
    a.salu('s_lshr_b32', 's32', f's{sT1}', 2)
    a.salu('s_lshr_b32', 's33', 's31', 1)
    a.salu('s_and_b32', 's34', 's31', 1)
    a.salu('s_mul_i32', f's{sT0}', 's30', 40)
    a.salu('s_add_u32', 's4', 's0', f's{sT0}')
    a.salu('s_addc_u32', 's5', 's1', 0)
    a.raw('s_load_dwordx2 s[40:41], s[4:5], 32', sw=[40, 41])
    a.raw('s_load_dwordx2 s[42:43], s[0:1], 80', sw=[42, 43])
    a.raw('s_load_dwordx2 s[44:45], s[0:1], 96', sw=[44, 45])
    vl, vg, vi, vr_, vc = vT[0], vT[1], vT[2], vT[3], vT[4]
    a.valu('v_lshrrev_b32', f'v{vT[5]}', 6, 'v0')
    a.readfirstlane(sWv, vT[5])
    a.valu('v_and_b32', f'v{vl}', 63, 'v0')
    a.valu('v_lshrrev_b32', f'v{vg}', 4, f'v{vl}')
    a.valu('v_and_b32', f'v{vi}', 15, f'v{vl}')
    a.valu('v_lshrrev_b32', f'v{vr_}', 2, f'v{vi}')
    a.valu('v_and_b32', f'v{vc}', 3, f'v{vi}')
    a.valu('v_lshlrev_b32', f'v{vLane16}', 4, f'v{vl}')
    a.salu('s_sub_u32', 's35', 7, 's34')
    a.salu('s_mul_i32', 's36', 's34', 7)
    a.wait(lgkm=0)
    a.salu('s_lshl_b32', f's{sT0}', 's32', 7)
    a.salu('s_add_u32', f's{sWo}', 's40', f's{sT0}'); a.salu('s_addc_u32', f's{sWo+1}', 's41', 0)
    a.salu('s_sub_u32', f's{sWo+2}', 4194304, f's{sT0}'); a.salu('s_mov_b32', f's{sWo+3}', 0x00020000)
    a.salu('s_lshl_b32', f's{sT0}', 's30', 3)
    a.salu('s_add_u32', f's{sT0}', f's{sT0}', 's33')
    a.salu('s_mul_i32', f's{sT0}', f's{sT0}', 13)
    a.salu('s_add_u32', f's{sT0}', f's{sT0}', 's36')
    a.salu('s_lshl_b32', f's{sT0}', f's{sT0}', 17)
    a.salu('s_add_u32', f's{sOs}', 's44', f's{sT0}'); a.salu('s_addc_u32', f's{sOs+1}', 's45', 0)
    a.salu('s_lshl_b32', f's{sOs+2}', 's35', 17); a.salu('s_mov_b32', f's{sOs+3}', 0x00020000)
    a.salu('s_mul_i32', f's{sT0}', 's33', 208)
    a.salu('s_lshl_b32', f's{sT1}', 's36', 4)
    a.salu('s_add_u32', f's{sT0}', f's{sT0}', f's{sT1}')
    a.salu('s_lshl_b32', f's{sT0}', f's{sT0}', 11)
    a.salu('s_lshl_b32', f's{sT1}', 's30', 10)
    a.salu('s_add_u32', f's{sT0}', f's{sT0}', f's{sT1}')
    a.salu('s_lshl_b32', f's{sT1}', 's32', 7)
    a.salu('s_add_u32', f's{sT0}', f's{sT0}', f's{sT1}')
    a.salu('s_add_u32', f's{sOut}', 's42', f's{sT0}'); a.salu('s_addc_u32', f's{sOut+1}', 's43', 0)
    a.salu('s_lshl_b32', f's{sT0}', 's35', 15)
    a.salu('s_sub_u32', f's{sOut+2}', f's{sT0}', 2048 - 128); a.salu('s_mov_b32', f's{sOut+3}', 0x00020000)
    a.valu('v_lshlrev_b32', f'v{vWD}', 1, f'v{vg}')
    a.valu('v_and_b32', f'v{vT[5]}', 7, f'v{vl}')
    a.valu('v_xor_b32', f'v{vWD}', f'v{vWD}', f'v{vT[5]}')
    a.valu('v_lshlrev_b32', f'v{vWD}', 4, f'v{vWD}')
    a.valu('v_lshrrev_b32', f'v{vT[5]}', 3, f'v{vl}')
    a.valu('v_lshl_add_u32', f'v{vWD}', f'v{vT[5]}', 10, f'v{vWD}')
    a.valu('v_and_b32', f'v{vT[5]}', 1, f'v{vg}')
    a.valu('v_lshlrev_b32', f'v{vT[5]}', 1, f'v{vT[5]}')
    a.valu('v_lshrrev_b32', f'v{vA[0]}', 1, f'v{vr_}')
    a.valu('v_or_b32', f'v{vT[5]}', f'v{vT[5]}', f'v{vA[0]}')
    a.valu('v_lshlrev_b32', f'v{vA[0]}', 5, f'v{vT[5]}')
    a.valu('v_lshl_add_u32', f'v{vA[0]}', f'v{vc}', 3, f'v{vA[0]}')
    a.valu('v_lshl_add_u32', f'v{vA[0]}', f'v{vr_}', 7, f'v{vA[0]}')
    a.valu('v_lshl_add_u32', f'v{vA[0]}', f'v{vg}', 9, f'v{vA[0]}')
    for nt in range(1, 4):
        a.valu('v_xor_b32', f'v{vA[nt]}', nt << 5, f'v{vA[0]}')
    a.valu('v_lshlrev_b32', f'v{vOO}', 11, f'v{vi}')
    a.valu('v_lshl_add_u32', f'v{vOO}', f'v{vg}', 4, f'v{vOO}')
    a.salu('s_lshl_b32', f's{sM0b}', f's{sWv}', 12)
    a.salu('s_lshl_b32', f's{sWoff}', f's{sWv}', 15)
    a.salu('s_lshl_b32', f's{sOoff[0]}', f's{sWv}', 18)
    a.salu('s_add_u32', f's{sOoff[1]}', f's{sOoff[0]}', 131072)

    def loads(slot):
        for k in range(4):
            a.salu('s_add_u32', 'm0', f's{sM0b}', slot * 16384 + k * 1024)
            if k == 0:
                a.nop(0)
                a.buf_load_lds(vWD, sWo, sWoff)
            else:
                a.salu('s_add_u32', f's{sT0}', f's{sWoff}', k * 8192)
                a.buf_load_lds(vWD, sWo, sT0)
        a.salu('s_add_u32', f's{sWoff}', f's{sWoff}', 131072)
        for ks in range(4):
            for t in range(2):
                a.buf_load(OB(slot, ks, t), 4, vLane16, sOs, sOoff[t], offset=ks * 1024)
        a.salu('s_add_u32', f's{sOoff[0]}', f's{sOoff[0]}', 4096)
        a.salu('s_add_u32', f's{sOoff[1]}', f's{sOoff[1]}', 4096)

    for s in range(3): loads(s)
    for r in range(32): a.valu('v_mov_b32', f'v{r}', 0)

    def stage(slot, vmw, dma):
        a.wait(vm=vmw)
        a.barrier()
        if dma: loads((slot + 3) % 4)
        def rd(ks):
            for nt in range(4):
                f = F((ks & 1) * 4 + nt)
                a.ds_read('ds_read_b64_tr_b16', f, 2, vA[nt], slot * 16384 + ks * 4096)
                a.ds_read('ds_read_b64_tr_b16', f + 2, 2, vA[nt], slot * 16384 + ks * 4096 + 2048)
        rd(0)
        for ks in range(4):
            if ks < 3: rd(ks + 1)
            for nt in range(4):
                a.wait(lgkm=(8 if ks < 3 else 0) + 6 - 2 * nt)
                for t in range(2):
                    a.mfma16(ACC(t, nt), F((ks & 1) * 4 + nt), OB(slot, ks, t), ACC(t, nt))

    a.salu('s_mov_b32', f's{sCnt}', 0)
    a.label(f'{name}_loop')
    for j in range(4): stage(j, 24, True)
    a.salu('s_add_u32', f's{sCnt}', f's{sCnt}', 1)
    a.scmp('s_cmp_lt_u32', f's{sCnt}', 7)
    a.branch('s_cbranch_scc1', f'{name}_loop')
    stage(0, 24, True)
    stage(1, 24, False)
    stage(2, 12, False)
    stage(3, 0, False)
    a.nop(7)
    a.salu('s_lshl_b32', f's{sT0}', f's{sWv}', 16)
    for t in range(2):
        for p in range(2):
            A, B = ACC(t, 2 * p), ACC(t, 2 * p + 1)
            a.valu('v_cvt_pk_bf16_f32', f'v{A}', f'v{A}', f'v{A+1}')
            a.valu('v_cvt_pk_bf16_f32', f'v{A+1}', f'v{A+2}', f'v{A+3}')
            a.valu('v_cvt_pk_bf16_f32', f'v{A+2}', f'v{B}', f'v{B+1}')
            a.valu('v_cvt_pk_bf16_f32', f'v{A+3}', f'v{B+2}', f'v{B+3}')
            a.permswap('v_permlane32_swap_b32', A, A + 2)
            a.permswap('v_permlane32_swap_b32', A + 1, A + 3)
            a.permswap('v_permlane16_swap_b32', A, A + 2)
            a.permswap('v_permlane16_swap_b32', A + 1, A + 3)
            a.nop(1)
            a.buf_store(A, 4, vOO, sOut, sT0, offset=p * 64)
        if t == 0: a.salu('s_add_u32', f's{sT0}', f's{sT0}', 32768)
    a.label(f'{name}_done')
    a.raw('s_endpgm')
    return a.text()
```

```python
import sys, importlib
sys.path.insert(0, 'gen')
from k1 import gen_k1
from k2 import gen_k2
NAME = 'concat_heads__mha_block_cached__mha_block_cached__near_ridge'
hdr = open('cdna_kernels/' + NAME + '.s.ref').read().split('; Override launch')[0]
def kd(name, vgpr, sgpr=102):
    return f'''.amdhsa_kernel {name}
  .amdhsa_next_free_vgpr {vgpr}
  .amdhsa_next_free_sgpr {sgpr}
  .amdhsa_accum_offset {(vgpr+3)//4*4}
  .amdhsa_group_segment_fixed_size 0
  .amdhsa_kernarg_size 104
  .amdhsa_user_sgpr_count 2
  .amdhsa_user_sgpr_kernarg_segment_ptr 1
  .amdhsa_system_sgpr_workgroup_id_x 1
.end_amdhsa_kernel
'''
def build(which=('k1', 'k2')):
    K1 = NAME + '_kernel'; K2 = 'oproj_kernel'
    o = hdr
    if 'k1' in which: o += f'; @launch kernel={K1} grid=(512,1,1) block=(256,1,1) lds=81920\n'
    if 'k2' in which: o += f'; @launch kernel={K2} grid=(256,1,1) block=(256,1,1) lds=65536\n'
    o += '.amdgcn_target "amdgcn-amd-amdhsa--gfx950"\n.text\n'
    o += f'.globl {K1}\n.p2align 8\n.type {K1},@function\n{K1}:\n' + gen_k1('k1') + '\n'
    o += f'.globl {K2}\n.p2align 8\n.type {K2},@function\n{K2}:\n' + gen_k2('k2') + '\n'
    o += '.section .rodata,"a"\n.p2align 6\n' + kd(K1, 256) + '.p2align 6\n' + kd(K2, 208)
    return o
if __name__ == '__main__':
    out = sys.argv[1] if len(sys.argv) > 1 else 'cdna_kernels/' + NAME + '.s'
    which = sys.argv[2].split(',') if len(sys.argv) > 2 else ('k1', 'k2')
    open(out, 'w').write(build(which))
```

```python
from dsl import *
import math, struct

TLOG = 16.0
def f2u(x): return struct.unpack('<I', struct.pack('<f', x))[0]

def gen_k1(name, prof=None, warm=0, kvrate=1, kvstart=0, wopf=1, nkv=16, pmode=0, prio=1, xwnt=0, ostnt=0):
    XW = 'nt' if xwnt else ''
    a = Asm()
    stamps = [0]
    def stamp(fine=False):
        if prof is None: return
        if fine != (pmode == 1):
            if stamps[0] > 0: return
        i = stamps[0]; stamps[0] += 1
        assert i < 16
        a.raw(f's_memtime s[{64+2*i}:{65+2*i}]', sw=[64 + 2 * i, 65 + 2 * i])
    def dump_stamps():
        if prof is None: return
        a.raw('s_memrealtime s[62:63]', sw=[62, 63])
        a.raw('s_getreg_b32 s58, hwreg(HW_REG_HW_ID)', sw=[58])
        a.raw('s_getreg_b32 s59, hwreg(HW_REG_XCC_ID)', sw=[59])
        a.wait(lgkm=0)
        a.salu('s_add_u32', 's96', 's56', 128 << 20); a.salu('s_addc_u32', 's97', 's57', 0)
        a.salu('s_mov_b32', 's98', 1 << 20); a.salu('s_mov_b32', 's99', 0x00020000)
        a.salu('s_lshl_b32', 's100', 's2', 7)
        a.salu('s_lshl_b32', 's101', f's{sWV}', 4)
        a.salu('s_add_u32', 's100', 's100', 's101')
        a.valu('v_mov_b32', 'v1', 0)
        a.valu('v_mov_b32', 'v4', 's60'); a.valu('v_mov_b32', 'v5', 's62'); a.valu('v_mov_b32', 'v6', 's58'); a.valu('v_mov_b32', 'v7', 's59')
        a.buf_store(4, 4, 1, 96, 100)
        a.scmp('s_cmp_lg_u32', 's2', prof)
        a.branch('s_cbranch_scc1', f'{name}_nodump')
        a.salu('s_and_b32', 's100', f's{sWV}', 1)
        a.scmp('s_cmp_lg_u32', 's100', 0)
        a.branch('s_cbranch_scc1', f'{name}_nodump')
        a.raw('s_load_dwordx2 s[96:97], s[0:1], 88', sw=[96, 97])
        a.wait(lgkm=0)
        a.salu('s_mov_b32', 's98', 256); a.salu('s_mov_b32', 's99', 0x00020000)
        a.salu('s_lshl_b32', 's100', f's{sWV}', 5)
        a.valu('v_mov_b32', 'v1', 0)
        for i in range(stamps[0]):
            a.salu('s_sub_u32', 's101', f's{64+2*i}', 's64')
            a.valu('v_mov_b32', 'v2', 's101')
            a.buf_store(2, 1, 1, 96, 100, offset=i * 4)
        a.label(f'{name}_nodump')

    lq = []
    def lds_issue(tag): lq.append(tag)
    def lds_wait(tag):
        idx = [i for i, t in enumerate(lq) if t == tag]
        if not idx: return
        n = len(lq) - 1 - max(idx)
        a.wait(lgkm=min(n, 15))
        del lq[:max(idx) + 1]

    O = lambda t, dt: (t * 8 + dt) * 4
    Q = lambda t, p: 104 + (t * 4 + p) * 4
    S = lambda t, kt: 168 + (t * 2 + kt) * 4
    F = lambda i: 200 + i * 4
    KVS = lambda i: 104 + i * 4
    XF = lambda par, t: 168 + (par * 4 + t) * 4
    QACC = lambda t, i: (t * 8 + i) * 4
    QACCL = lambda i: 96 + i * 4
    NM = lambda t: 232 + 4 * t
    vNML = 244
    vL = [245, 246, 247, 248]
    vKA, vVA, vKD, vVD = 249, 250, 251, 252
    vT0, vT1, vT2 = 253, 254, 255
    vWD, vXA0, vXA1, vXL0, vXL1, vXO, vWA, vLane16 = 232, 233, 234, 235, 236, 237, 238, 239
    vP = [240, 241, 242, 243, 244, 245]
    XB0, XB1, WR, NWS = 0, 32768, 65536, 6
    KG = 1088; KPAGE = 8 * KG; SLOT = KPAGE + 8192; RING = 4 * SLOT
    QLB = 2 * RING
    sK, sV, sW, sX, sO = 8, 12, 16, 20, 24
    sWo = 92
    sWv, sWV, sHd = 28, 29, 30
    sThr, sFlr = 31, 32
    sKVoff = 33
    sRet = 34
    sCnt = 36
    sT0, sT1, sT2 = 37, 38, 39
    sW1k, sXm0, sW32k, sKm0, sVm0, sWm0, sXso = 40, 41, 42, 43, 44, 5, 6
    sB, sScale, sH = 45, 46, 47

    a.scmp('s_cmp_ge_u32', 's2', 256)
    a.branch('s_cbranch_scc1', f'{name}_done')
    stamp()
    if prof is not None:
        a.raw('s_memrealtime s[60:61]', sw=[60, 61])
    a.salu('s_lshr_b32', f's{sT0}', 's2', 7)
    a.salu('s_mul_i32', f's{sT1}', f's{sT0}', 40)
    a.salu('s_add_u32', 's4', 's0', f's{sT1}')
    a.salu('s_addc_u32', 's5', 's1', 0)
    a.raw('s_load_dwordx8 s[48:55], s[4:5], 0', sw=list(range(48, 56)))
    a.raw('s_load_dwordx2 s[56:57], s[0:1], 96', sw=[56, 57])
    a.raw(f's_load_dwordx2 s[{sWo}:{sWo+1}], s[4:5], 32', sw=[sWo, sWo + 1])
    a.salu('s_mov_b32', f's{sWo+2}', 4194304); a.salu('s_mov_b32', f's{sWo+3}', 0x00020000)
    vl, vg, vi, vr_, vc, t5 = vP
    a.valu('v_lshrrev_b32', f'v{t5}', 6, 'v0')
    a.readfirstlane(sWV, t5)
    a.valu('v_and_b32', f'v{vl}', 63, 'v0')
    a.valu('v_lshrrev_b32', f'v{vg}', 4, f'v{vl}')
    a.valu('v_and_b32', f'v{vi}', 15, f'v{vl}')
    a.valu('v_lshrrev_b32', f'v{vr_}', 2, f'v{vi}')
    a.valu('v_and_b32', f'v{vc}', 3, f'v{vi}')
    a.valu('v_lshlrev_b32', f'v{vLane16}', 4, f'v{vl}')
    a.salu('s_and_b32', f's{sWv}', f's{sWV}', 3)
    a.salu('s_lshr_b32', f's{sHd}', f's{sWV}', 2)
    a.salu('s_lshr_b32', f's{sB}', 's2', 4)
    a.salu('s_and_b32', f's{sB}', f's{sB}', 7)
    a.salu('s_and_b32', f's{sH}', 's2', 15)
    a.salu('s_lshl_b32', f's{sH}', f's{sH}', 1)
    a.salu('s_add_u32', f's{sH}', f's{sH}', f's{sHd}')
    a.salu('s_lshl_b32', f's{sT1}', f's{sB}', 5)
    a.salu('s_add_u32', f's{sT1}', f's{sT1}', f's{sH}')
    a.wait(lgkm=0)
    a.salu('s_mul_i32', 's58', f's{sB}', 212992)
    a.salu('s_add_u32', f's{sX}', 's48', 's58'); a.salu('s_addc_u32', f's{sX+1}', 's49', 0)
    a.salu('s_mov_b32', f's{sX+2}', 212992); a.salu('s_mov_b32', f's{sX+3}', 0x00020000)
    a.salu('s_lshl_b32', 's58', f's{sT1}', 17)
    a.salu('s_add_u32', f's{sK}', 's50', 's58'); a.salu('s_addc_u32', f's{sK+1}', 's51', 0)
    a.salu('s_mov_b32', f's{sK+2}', 131072); a.salu('s_mov_b32', f's{sK+3}', 0x00020000)
    a.salu('s_add_u32', f's{sV}', 's52', 's58'); a.salu('s_addc_u32', f's{sV+1}', 's53', 0)
    a.salu('s_mov_b32', f's{sV+2}', 131072); a.salu('s_mov_b32', f's{sV+3}', 0x00020000)
    a.salu('s_lshl_b32', 's58', f's{sH}', 8)
    a.salu('s_add_u32', f's{sW}', 's54', 's58'); a.salu('s_addc_u32', f's{sW+1}', 's55', 0)
    a.salu('s_sub_u32', f's{sW+2}', 4194304, 's58'); a.salu('s_mov_b32', f's{sW+3}', 0x00020000)
    a.salu('s_lshl_b32', 's58', f's{sT0}', 3)
    a.salu('s_add_u32', 's58', 's58', f's{sB}')
    a.salu('s_mul_i32', 's58', 's58', 13 * 128 * 1024)
    a.salu('s_lshl_b32', 's59', f's{sH}', 12)
    a.salu('s_add_u32', 's58', 's58', 's59')
    a.salu('s_add_u32', f's{sO}', 's56', 's58'); a.salu('s_addc_u32', f's{sO+1}', 's57', 0)
    a.salu('s_mov_b32', f's{sO+2}', 12 * 131072 + 4096); a.salu('s_mov_b32', f's{sO+3}', 0x00020000)
    a.salu('s_mov_b32', f's{sThr}', hex(f2u(TLOG)))
    a.salu('s_mov_b32', f's{sScale}', hex(f2u(math.log2(math.e) / math.sqrt(128.0))))
    a.salu('s_lshl_b32', f's{sW1k}', f's{sWv}', 10)
    a.salu('s_lshl_b32', f's{sXm0}', f's{sWV}', 10)
    a.salu('s_lshl_b32', f's{sXso}', f's{sWV}', 13)
    a.salu('s_lshl_b32', f's{sW32k}', f's{sWv}', 15)
    a.salu('s_mul_i32', f's{sT0}', f's{sHd}', RING)
    a.salu('s_mul_i32', f's{sKm0}', f's{sWv}', KG)
    a.salu('s_add_u32', f's{sKm0}', f's{sKm0}', f's{sT0}')
    a.salu('s_add_u32', f's{sVm0}', f's{sW1k}', f's{sT0}')
    a.salu('s_add_u32', f's{sVm0}', f's{sVm0}', KPAGE)
    a.salu('s_lshl_b32', f's{sWm0}', f's{sHd}', 13)
    a.salu('s_add_u32', f's{sWm0}', f's{sWm0}', f's{sW1k}')
    a.salu('s_and_b32', f's{sT1}', f's{sWv}', 1)
    a.salu('s_lshl_b32', f's{sT1}', f's{sT1}', 2)
    a.valu('v_or_b32', f'v{vXO}', f's{sT1}', f'v{vg}')
    a.valu('v_and_b32', f'v{t5}', 7, f'v{vl}')
    a.valu('v_xor_b32', f'v{vXO}', f'v{vXO}', f'v{t5}')
    a.valu('v_lshlrev_b32', f'v{vXO}', 4, f'v{vXO}')
    a.valu('v_lshrrev_b32', f'v{t5}', 3, f'v{vl}')
    a.valu('v_lshl_add_u32', f'v{vXO}', f'v{t5}', 10, f'v{vXO}')
    a.valu('v_or_b32', f'v{vVD}', f's{sT1}', f'v{vg}')
    a.valu('v_lshlrev_b32', f'v{vVD}', 1, f'v{vVD}')
    a.valu('v_xor_b32', f'v{vVD}', f'v{vi}', f'v{vVD}')
    a.valu('v_lshlrev_b32', f'v{vVD}', 4, f'v{vVD}')
    a.valu('v_lshl_add_u32', f'v{vVD}', f'v{vg}', 8, f'v{vVD}')
    a.valu('v_lshrrev_b32', f'v{vXL0}', 1, f'v{vi}')
    a.valu('v_xor_b32', f'v{vXL0}', f'v{vXL0}', f'v{vg}')
    a.valu('v_lshlrev_b32', f'v{vXL0}', 4, f'v{vXL0}')
    a.valu('v_lshl_add_u32', f'v{vXL0}', f'v{vi}', 7, f'v{vXL0}')
    a.valu('v_xor_b32', f'v{vXL1}', 64, f'v{vXL0}')
    a.salu('s_mul_i32', f's{sT1}', f's{sWv}', 3 * 2048)
    a.valu('v_add_u32', f'v{vXA0}', f's{sT1}', f'v{vXL0}')
    a.valu('v_add_u32', f'v{vXA1}', f's{sT1}', f'v{vXL1}')
    a.valu('v_xor_b32', f'v{vKD}', f'v{vi}', f'v{vg}')
    a.valu('v_lshlrev_b32', f'v{vKD}', 4, f'v{vKD}')
    a.valu('v_lshl_add_u32', f'v{vKD}', f'v{vg}', 8, f'v{vKD}')
    a.salu('s_and_b32', f's{sT1}', f's{sWv}', 2)
    a.salu('s_lshl_b32', f's{sT1}', f's{sT1}', 1)
    a.valu('v_or_b32', f'v{vWD}', f's{sT1}', f'v{vg}')
    a.valu('v_lshlrev_b32', f'v{vWD}', 1, f'v{vWD}')
    a.valu('v_xor_b32', f'v{vWD}', f'v{vi}', f'v{vWD}')
    a.valu('v_lshlrev_b32', f'v{vWD}', 4, f'v{vWD}')
    a.valu('v_lshl_add_u32', f'v{vWD}', f'v{vg}', 13, f'v{vWD}')
    a.valu('v_and_b32', f'v{t5}', 1, f'v{vg}')
    a.valu('v_lshl_add_u32', f'v{t5}', f'v{t5}', 2, f'v{vr_}')
    a.valu('v_lshlrev_b32', f'v{t5}', 5, f'v{t5}')
    a.valu('v_lshl_add_u32', f'v{t5}', f'v{vc}', 3, f'v{t5}')
    a.valu('v_lshl_add_u32', f'v{t5}', f'v{vr_}', 8, f'v{t5}')
    a.valu('v_lshl_add_u32', f'v{vWA}', f'v{vg}', 11, f'v{t5}')
    a.salu('s_lshl_b32', f's{sT1}', f's{sHd}', 13)
    a.salu('s_add_u32', f's{sT1}', f's{sT1}', WR)
    a.valu('v_add_u32', f'v{vWA}', f's{sT1}', f'v{vWA}')
    a.valu('v_lshl_add_u32', f'v{vVA}', f'v{vg}', 10, f'v{t5}')
    a.salu('s_lshl_b32', f's{sT1}', f's{sWv}', 6)
    a.valu('v_xor_b32', f'v{vVA}', f's{sT1}', f'v{vVA}')
    a.salu('s_add_u32', f's{sT1}', f's{sT0}', KPAGE)
    a.valu('v_add_u32', f'v{vVA}', f's{sT1}', f'v{vVA}')
    a.valu('v_xor_b32', f'v{t5}', f'v{vg}', f'v{vc}')
    a.valu('v_lshlrev_b32', f'v{t5}', 4, f'v{t5}')
    a.valu('v_lshl_add_u32', f'v{t5}', f'v{vc}', 8, f'v{t5}')
    a.valu('v_mul_u32_u24', f'v{vKA}', KG, f'v{vr_}')
    a.valu('v_add3_u32', f'v{vKA}', f'v{vKA}', f'v{t5}', f's{sT0}')

    def dma1(ps, i):
        kv, hi = i >> 1, i & 1
        if kv == 0: a.salu('s_add_u32', 'm0', f's{sKm0}', ps * SLOT + hi * 4 * KG)
        else: a.salu('s_add_u32', 'm0', f's{sVm0}', ps * SLOT + hi * 4096)
        if hi:
            a.salu('s_add_u32', f's{sT0}', f's{sKVoff}', 4096)
            a.buf_load_lds(vVD if kv else vKD, sV if kv else sK, sT0, mods='nt')
        else:
            a.nop(0)
            a.buf_load_lds(vVD if kv else vKD, sV if kv else sK, sKVoff, mods='nt')
        if i == 3: a.salu('s_add_u32', f's{sKVoff}', f's{sKVoff}', 8192)
    q = []
    def issue(tag): q.append(tag)
    def waitfor(tags):
        last = max(i for i, t in enumerate(q) if t in tags)
        return len(q) - 1 - last
    def xdma1(sg, i):
        a.salu('s_add_u32', 'm0', f's{sXm0}', (XB1 if sg & 1 else XB0) + i * 8192)
        a.salu('s_add_u32', f's{sT0}', f's{sXso}', i * 65536 + sg * 128)
        a.buf_load_lds(vXO, sX, sT0, mods=XW)
        issue(('x', sg))
    def wdma1(s, i):
        a.salu('s_add_u32', 'm0', f's{sWm0}', WR + (s % NWS) * 16384 + i * 4096)
        a.salu('s_add_u32', f's{sT0}', f's{sW32k}', (32 * s + 16 * i) * 8192)
        a.buf_load_lds(vWD, sW, sT0, mods=XW)
        issue(('w', s))
    def kvload(i):
        blk, kv, hi = i >> 2, (i >> 1) & 1, i & 1
        a.salu('s_add_u32', f's{sT0}', f's{sW1k}', blk * 8192 + hi * 4096)
        a.buf_load(KVS(i), 4, vVD if kv else vKD, sV if kv else sK, sT0, mods='nt')
        issue(('kv', i))
    def xread(s):
        sg = s >> 1
        xb = XB1 if sg & 1 else XB0
        for t in range(3):
            a.ds_read('ds_read_b128', XF(s & 1, t), 4, vXA1 if s & 1 else vXA0, xb + t * 2048); lds_issue(('x', s))
        a.ds_read('ds_read_b128', XF(s & 1, 3), 4, vXL1 if s & 1 else vXL0, xb + 12 * 2048); lds_issue(('x', s))
    def wread(s, i):
        ad = vWA
        if i:
            ad = vP[i % 4]
            a.valu('v_xor_b32', f'v{ad}', i << 5, f'v{vWA}')
        off = (s % NWS) * 16384
        if off + 1024 >= 65536:
            if not i:
                ad = vP[0]
                a.valu('v_add_u32', f'v{ad}', 65536, f'v{vWA}')
            else:
                a.valu('v_add_u32', f'v{ad}', 65536, f'v{ad}')
            off -= 65536
        a.ds_read('ds_read_b64_tr_b16', F(i), 2, ad, off); lds_issue(('w', s, i))
        a.ds_read('ds_read_b64_tr_b16', F(i) + 2, 2, ad, off + 1024); lds_issue(('w', s, i))
    for i in range(2): wdma1(0, i)
    for i in range(4): xdma1(0, i)
    for s in range(1, NWS - 1):
        for i in range(2): wdma1(s, i)
    for i in range(4): xdma1(1, i)
    if warm:
        a.salu('s_lshl_b32', f's{sT0}', f's{sB}', 19)
        a.salu('s_lshl_b32', f's{sT2}', f's{sWv}', 17)
        a.salu('s_add_u32', f's{sT0}', f's{sT0}', f's{sT2}')
        for k in range(4):
            a.buf_load(KVS(k), 4, vWD, sW, sT0, mods=XW)
            issue(('warm', 0))
            if k < 3: a.salu('s_add_u32', f's{sT0}', f's{sT0}', 4 * 8192)
    if warm >= 2:
        a.salu('s_lshr_b32', f's{sT0}', 's2', 3)
        a.salu('s_and_b32', f's{sT0}', f's{sT0}', 1)
        a.salu('s_mul_i32', f's{sT0}', f's{sT0}', 104 * 1024)
        a.salu('s_mul_i32', f's{sT2}', f's{sWV}', 13 * 1024)
        a.salu('s_add_u32', f's{sT0}', f's{sT0}', f's{sT2}')
        for k in range(13):
            a.buf_load(KVS(k), 4, vLane16, sX, sT0, offset=(k % 4) * 1024, mods=XW)
            issue(('warm', 0))
            if k % 4 == 3: a.salu('s_add_u32', f's{sT0}', f's{sT0}', 4096)
    a.wait(vm=waitfor([('x', 0), ('w', 0)]))
    a.barrier()
    stamp()
    xread(0)
    for i in range(8): wread(0, i)
    kvnext = [0]
    for s in range(16):
        a.comment(f'phase1 kstep {s}')
        sg = s >> 1
        lds_wait(('x', s))
        if s + 1 < 16:
            a.wait(vm=waitfor([('x', (s + 1) >> 1), ('w', s + 1)]))
            a.barrier()
        if s in (4, 8, 12): stamp()
        vm = []
        if s + NWS - 1 < 16: vm += [lambda i=i: wdma1(s + NWS - 1, i) for i in range(2)]
        if s % 2 == 1 and sg + 2 < 8: vm += [lambda i=i: xdma1(sg + 2, i) for i in range(4)]
        for _ in range(kvrate if s >= kvstart else 0):
            if kvnext[0] < nkv:
                vm.append(lambda i=kvnext[0]: kvload(i)); kvnext[0] += 1
        if s + 1 < 16: xread(s + 1)
        for i in range(8):
            lds_wait(('w', s, i))
            for t in range(3):
                a.mfma16(QACC(t, i), F(i), XF(s & 1, t), QACC(t, i) if s else '0')
                if vm and t == 1: vm.pop(0)()
            if i & 1:
                a.scmp('s_cmp_eq_u32', f's{sWv}', i >> 1)
                a.branch('s_cbranch_scc0', f'{name}_p1l_{s}_{i}')
                a.mfma16(QACCL(0), F(i - 1), XF(s & 1, 3), QACCL(0) if s else '0')
                a.mfma16(QACCL(1), F(i), XF(s & 1, 3), QACCL(1) if s else '0')
                a.label(f'{name}_p1l_{s}_{i}')
                if s + 1 < 16:
                    wread(s + 1, i - 1); wread(s + 1, i)
        assert not vm
    assert kvnext[0] == nkv
    stamp()
    a.barrier()
    a.salu('s_add_u32', f's{sKVoff}', f's{sW1k}', (nkv // 4) * 8192)
    for ps in range(nkv // 4, 4):
        for i in range(4): dma1(ps, i)
    if wopf:
        a.raw('s_load_dwordx2 s[58:59], s[4:5], 32', sw=[58, 59]) if False else None
    a.wait(vm=16 - nkv)
    a.valu('v_add_u32', f'v{vP[0]}', f's{sKm0}', f'v{vLane16}')
    a.valu('v_add_u32', f'v{vP[1]}', f's{sVm0}', f'v{vLane16}')
    for i in range(nkv):
        blk, kv, hi = i >> 2, (i >> 1) & 1, i & 1
        if kv == 0: a.ds_write('ds_write_b128', vP[0], KVS(i), 4, blk * SLOT + hi * 4 * KG)
        else: a.ds_write('ds_write_b128', vP[1], KVS(i), 4, blk * SLOT + hi * 4096)
    sWoo = 7
    a.salu('s_and_b32', f's{sT0}', 's2', 127)
    a.salu('s_lshl_b32', f's{sT0}', f's{sT0}', 15)
    a.salu('s_lshl_b32', f's{sT1}', f's{sWV}', 12)
    a.salu('s_add_u32', f's{sWoo}', f's{sT0}', f's{sT1}')
    def wopf1(i):
        a.valu('v_mbcnt_lo_u32_b32', f'v{vT2}', -1, 0)
        a.valu('v_mbcnt_hi_u32_b32', f'v{vT2}', -1, f'v{vT2}')
        a.valu('v_lshlrev_b32', f'v{vT2}', 4, f'v{vT2}')
        a.salu('s_add_u32', 'm0', f's{sXm0}', QLB + 8192)
        a.nop(0)
        a.buf_load_lds(vT2, sWo, sWoo)
        a.salu('s_add_u32', f's{sWoo}', f's{sWoo}', 1024)
    def qscale(acc):
        for e in range(4): a.valu('v_mul_f32', f'v{acc+e}', f's{sScale}', f'v{acc+e}')
    def qfrag(dst, accA, accB):
        a.valu('v_cvt_pk_bf16_f32', f'v{dst}', f'v{accA}', f'v{accA+1}')
        a.valu('v_cvt_pk_bf16_f32', f'v{dst+1}', f'v{accA+2}', f'v{accA+3}')
        a.valu('v_cvt_pk_bf16_f32', f'v{dst+2}', f'v{accB}', f'v{accB+1}')
        a.valu('v_cvt_pk_bf16_f32', f'v{dst+3}', f'v{accB+2}', f'v{accB+3}')
    def qswap(dst):
        a.permswap('v_permlane32_swap_b32', dst, dst + 2)
        a.permswap('v_permlane32_swap_b32', dst + 1, dst + 3)
    def qswap2(dst):
        a.permswap('v_permlane16_swap_b32', dst, dst + 2)
        a.permswap('v_permlane16_swap_b32', dst + 1, dst + 3)
    for r in range(0, 104, 4): qscale(r)
    qfrag(S(0, 0), QACCL(0), QACCL(1));
    a.salu('s_lshl_b32', f's{sT0}', f's{sHd}', 12)
    a.salu('s_add_u32', f's{sT0}', f's{sT0}', QLB)
    a.valu('v_add_u32', f'v{vP[2]}', f's{sT0}', f'v{vLane16}')
    a.valu('v_add_u32', f'v{vP[3]}', f's{sW1k}', f'v{vP[2]}')
    qswap(S(0, 0)); a.nop(1); qswap2(S(0, 0))
    a.ds_write('ds_write_b128', vP[3], S(0, 0), 4)
    a.wait(lgkm=0)
    for t in range(3):
        for p in range(4): qfrag(Q(t, p), QACC(t, 2 * p), QACC(t, 2 * p + 1))
    for t in range(3):
        for p in range(4): qswap(Q(t, p))
    for t in range(3):
        for p in range(4): qswap2(Q(t, p))
    a.barrier()
    for p in range(4):
        a.ds_read('ds_read_b128', Q(3, p), 4, vP[2], p << 10); lds_issue(('ql', p))

    def kread(slot, i):
        kt, p = i >> 2, i & 3
        a.ds_read('ds_read_b128', F(i), 4, vKA, slot * SLOT + kt * 4 * KG + p * 64); lds_issue(('f', i))
    def vread(slot, dt):
        ad = vVA
        if dt:
            ad = vT1 if dt & 1 else vT2
            a.valu('v_xor_b32', f'v{ad}', dt << 5, f'v{vVA}')
        a.ds_read('ds_read_b64_tr_b16', F(dt), 2, ad, slot * SLOT); lds_issue(('f', dt))
        a.ds_read('ds_read_b64_tr_b16', F(dt) + 2, 2, ad, slot * SLOT + 4096); lds_issue(('f', dt))
    def xreduce(op, reg, t):
        a.valu('v_mov_b32', f'v{t}', f'v{reg}')
        a.permswap('v_permlane32_swap_b32', reg, t)
        a.valu(op, f'v{reg}', f'v{reg}', f'v{t}')
        a.valu('v_mov_b32', f'v{t}', f'v{reg}')
        a.permswap('v_permlane16_swap_b32', reg, t)
        a.valu(op, f'v{reg}', f'v{reg}', f'v{t}')

    def nmregs(t): return [NM(t) + e for e in range(4)] if t < 3 else [vNML]
    def sm_list(tag, t, first):
        L = []
        s0, s1, l = S(t, 0), S(t, 1), vL[t]
        regs = [s0 + e for e in range(4)] + [s1 + e for e in range(4)]
        L.append(lambda: a.valu('v_max3_f32', f'v{vT0}', f'v{regs[0]}', f'v{regs[1]}', f'v{regs[2]}'))
        L.append(lambda: a.valu('v_max3_f32', f'v{vT0}', f'v{vT0}', f'v{regs[3]}', f'v{regs[4]}'))
        L.append(lambda: a.valu('v_max3_f32', f'v{vT0}', f'v{vT0}', f'v{regs[5]}', f'v{regs[6]}'))
        L.append(lambda: a.valu('v_max_f32', f'v{vT0}', f'v{vT0}', f'v{regs[7]}'))
        if first:
            def init():
                tmp = l
                xreduce('v_max_f32', vT0, tmp)
                for r in regs: a.valu('v_sub_f32', f'v{r}', f'v{r}', f'v{vT0}')
                for r in nmregs(t): a.valu('v_sub_f32', f'v{r}', 0, f'v{vT0}')
            L.append(init)
        else:
            def chk():
                a.valu('v_cmp_lt_f32', 'vcc', f's{sThr}', f'v{vT0}')
                a.branch('s_cbranch_vccz', f'{name}_ok_{tag}')
                a.raw(f's_call_b64 s[{sRet}:{sRet+1}], {name}_fix_{t}', kind='branch')
                a.label(f'{name}_ok_{tag}')
            L.append(chk)
        for r in regs: L.append(lambda r=r: a.valu('v_exp_f32', f'v{r}', f'v{r}'))
        for k, r in enumerate(regs):
            if first and k == 0: continue
            if first and k == 1: L.append(lambda r=r: a.valu('v_add_f32', f'v{l}', f'v{regs[0]}', f'v{r}'))
            else: L.append(lambda r=r: a.valu('v_add_f32', f'v{l}', f'v{l}', f'v{r}'))
        L.append(lambda: a.valu('v_cvt_pk_bf16_f32', f'v{s0}', f'v{s0}', f'v{s0+1}'))
        L.append(lambda: a.valu('v_cvt_pk_bf16_f32', f'v{s0+1}', f'v{s0+2}', f'v{s0+3}'))
        L.append(lambda: a.valu('v_cvt_pk_bf16_f32', f'v{s0+2}', f'v{s1}', f'v{s1+1}'))
        L.append(lambda: a.valu('v_cvt_pk_bf16_f32', f'v{s0+3}', f'v{s1+2}', f'v{s1+3}'))
        return L

    def spread(G, items, g0, g1):
        n = len(items)
        for k, it in enumerate(items):
            G[g0 + (k * (g1 - g0)) // n].append(it)

    def stage(tag, slot, dma, last=False, vmw=8, first=False, wo=None):
        a.comment(f'phase2 stage {tag}')
        nslot = (slot + 1) % 4
        M = []
        for t in range(4):
            for i in range(8): M.append(('qk', t, i))
        for t in range(2):
            for dt in range(8): M.append(('pv', t, dt))
        for dt in range(2): M.append(('pv', 3, dt))
        for dt in range(8): M.append(('pv', 2, dt))
        G = [[] for _ in range(len(M) + 1)]
        pre = [[] for _ in range(len(M) + 1)]
        if dma:
            for i in range(4): G[1 + 2 * i].append(lambda i=i: dma1((slot + 3) % 4, i))
        if wo is not None and wopf: G[9].append(lambda: wopf1(wo))
        if not first:
            mv = [lambda r=S(3, 0) + e: a.valu('v_mov_b32', f'v{r}', f'v{vNML}') for e in range(8)]
            spread(G, mv, 0, 8)
        for i in range(8): G[24 + i].append(lambda i=i: vread(slot, i))
        spread(G, sm_list(f'{tag}_0', 0, first), 10, 24)
        spread(G, sm_list(f'{tag}_1', 1, first), 20, 36)
        spread(G, sm_list(f'{tag}_3', 3, first), 34, 46)
        spread(G, sm_list(f'{tag}_2', 2, first), 28, 48)
        if not last:
            def sync_next():
                a.wait(vm=vmw)
                a.barrier()
            pre[50].append(sync_next)
            for i in range(8): G[50 + i].append(lambda i=i: kread(nslot, i))
        for k, m in enumerate(M):
            if tag == 'r0' and k in (0, 8, 16, 24, 32, 40, 50): stamp(True)
            for f in pre[k]: f()
            if prio == 1:
                pm = {50: 3, 4: 3, 12: 2, 20: 2, 28: 1, 36: 1, 44: 0}
                pm = {50: 3, 8: 2, 22: 1, 36: 0}
                if k in pm: a.raw(f's_setprio {pm[k]}')
            if tag == 'r0' and k == 50: stamp(True)
            if tag == 'r1' and k in (0, 8, 16, 24, 32, 40, 50): stamp(True)
            if m[0] == 'qk':
                _, t, i = m
                if t == 0: lds_wait(('f', i))
                kt, p = i >> 2, i & 3
                if p: c = S(t, kt)
                elif first: c = '0'
                elif t < 3: c = NM(t)
                else: c = S(t, kt)
                a.mfma16(S(t, kt), F(i), Q(t, p), c)
            else:
                _, t, dt = m
                if t == 0: lds_wait(('f', dt))
                a.mfma16(O(t, dt), F(dt), S(t, 0), '0' if first else O(t, dt))
            for f in G[k]: f()

    if prio == 2:
        a.scmp('s_cmp_eq_u32', f's{sHd}', 0)
        a.branch('s_cbranch_scc1', f'{name}_noprio')
        a.raw('s_setprio 1')
        a.label(f'{name}_noprio')
    for i in range(8): kread(0, i)
    stage('p0', 0, False, first=True, vmw=12)
    stamp()
    for j in range(1, 4): stage(f'p{j}', j, True, wo=j, vmw=9 if j == 1 else 10)
    stamp()
    a.salu('s_mov_b32', f's{sCnt}', 0)
    a.label(f'{name}_loop')
    for j in range(4): stage(f'q{j}', j, True)
    a.salu('s_add_u32', f's{sCnt}', f's{sCnt}', 1)
    a.scmp('s_cmp_lt_u32', f's{sCnt}', 2)
    a.branch('s_cbranch_scc1', f'{name}_loop')
    stage('r0', 0, True, wo=0, vmw=9)
    stage('r1', 1, False, vmw=5)
    stage('r2', 2, False, vmw=0)
    stage('r3', 3, False, last=True)

    stamp()
    vLn = vT1
    a.valu('v_mbcnt_lo_u32_b32', f'v{vLn}', -1, 0)
    a.valu('v_mbcnt_hi_u32_b32', f'v{vLn}', -1, f'v{vLn}')
    a.valu('v_lshlrev_b32', f'v{vLn}', 4, f'v{vLn}')
    for t in range(4): xreduce('v_add_f32', vL[t], vT0)
    for t in range(4): a.valu('v_rcp_f32', f'v{vL[t]}', f'v{vL[t]}')
    a.salu('s_mul_i32', f's{sT1}', f's{sWv}', 3 * 131072)
    def ostore(t, p, soff):
        A, B = O(t, 2 * p), O(t, 2 * p + 1)
        for e in range(4):
            a.valu('v_mul_f32', f'v{A+e}', f'v{A+e}', f'v{vL[t]}')
            a.valu('v_mul_f32', f'v{B+e}', f'v{B+e}', f'v{vL[t]}')
        a.valu('v_cvt_pk_bf16_f32', f'v{A}', f'v{A}', f'v{A+1}')
        a.valu('v_cvt_pk_bf16_f32', f'v{A+1}', f'v{A+2}', f'v{A+3}')
        a.valu('v_cvt_pk_bf16_f32', f'v{A+2}', f'v{B}', f'v{B+1}')
        a.valu('v_cvt_pk_bf16_f32', f'v{A+3}', f'v{B+2}', f'v{B+3}')
        a.buf_store(A, 4, vLn, sO, soff, mods=('nt' if ostnt else ''))
    a.salu('s_add_u32', f's{sT0}', f's{sW1k}', 12 * 131072)
    ostore(3, 0, sT0)
    for t in range(3):
        for p in range(4):
            a.salu('s_xor_b32', f's{sT0}', f's{sW1k}', p << 10)
            a.salu('s_add_u32', f's{sT0}', f's{sT0}', f's{sT1}')
            ostore(t, p, sT0)
        if t < 2: a.salu('s_add_u32', f's{sT1}', f's{sT1}', 131072)
    stamp()
    if prof is not None:
        a.wait(vm=0)
        stamp()
    dump_stamps()
    a.label(f'{name}_done')
    a.raw('s_endpgm')

    def fix(t):
        a.label(f'{name}_fix_{t}')
        a.nop(7); a.nop(7); a.nop(3)
        xreduce('v_max_f32', vT0, vT1)
        a.valu('v_max_f32', f'v{vT0}', 0, f'v{vT0}')
        for r in [S(t, 0) + e for e in range(8)]:
            a.valu('v_sub_f32', f'v{r}', f'v{r}', f'v{vT0}')
        for r in nmregs(t):
            a.valu('v_sub_f32', f'v{r}', f'v{r}', f'v{vT0}')
        a.valu('v_exp_f32', f'v{vT0}', f'-v{vT0}')
        a.valu('v_mul_f32', f'v{vL[t]}', f'v{vL[t]}', f'v{vT0}')
        for dt in range(8 if t < 3 else 2):
            for e in range(4):
                a.valu('v_mul_f32', f'v{O(t,dt)+e}', f'v{O(t,dt)+e}', f'v{vT0}')
        a.nop(3)
        a.raw(f's_setpc_b64 s[{sRet}:{sRet+1}]', kind='branch')
    for t in range(4): fix(t)
    return a.text()
```

```python
from dsl import *

def gen_k2(name, prof=None, nomf=0, noo=0, now=0, ont=0, pf=0, wnt=0):
    WM = 'nt' if wnt else ''
    a = Asm()
    stamps = [0]
    def stamp():
        if prof is None: return
        i = stamps[0]; stamps[0] += 1
        assert i < 16
        a.raw(f's_memtime s[{64+2*i}:{65+2*i}]', sw=[64 + 2 * i, 65 + 2 * i])
    def dump_stamps():
        if prof is None: return
        a.wait(lgkm=0)
        a.scmp('s_cmp_lg_u32', 's2', prof)
        a.branch('s_cbranch_scc1', f'{name}_nodump')
        a.raw('s_load_dwordx2 s[96:97], s[0:1], 88', sw=[96, 97])
        a.wait(lgkm=0)
        a.salu('s_mov_b32', 's98', 256); a.salu('s_mov_b32', 's99', 0x00020000)
        a.salu('s_lshl_b32', 's100', 's20', 6)
        a.valu('v_mov_b32', 'v1', 0)
        for i in range(stamps[0]):
            a.salu('s_sub_u32', 's101', f's{64+2*i}', 's64')
            a.valu('v_mov_b32', 'v2', 's101')
            a.buf_store(2, 1, 1, 96, 100, offset=i * 4)
        a.label(f'{name}_nodump')
    ACC = lambda t, nt: (t * 4 + nt) * 4
    OB = lambda buf, ks, t: 32 + ((buf * 4 + ks) * 2 + t) * 4
    F = lambda i: 160 + i * 4
    vA = [192, 193, 194, 195]
    vLane16 = 196
    vWD = 197
    vOO = 198
    vT = [199, 200, 201, 202, 203, 204]
    sWo, sOs, sOut = 8, 12, 16
    sWv = 20
    sT0, sT1, sT2, sT3 = 21, 22, 23, 24
    sM0b = 25
    sWoff = 26
    sOoff = [27, 28]
    sCnt = 29

    a.scmp('s_cmp_ge_u32', 's2', 256)
    a.branch('s_cbranch_scc1', f'{name}_done')
    stamp()
    a.salu('s_and_b32', f's{sT0}', 's2', 7)
    a.salu('s_lshr_b32', f's{sT1}', 's2', 3)
    a.salu('s_lshr_b32', 's30', f's{sT0}', 2)
    a.salu('s_and_b32', f's{sT0}', f's{sT0}', 3)
    a.salu('s_lshl_b32', f's{sT0}', f's{sT0}', 2)
    a.salu('s_and_b32', f's{sT2}', f's{sT1}', 3)
    a.salu('s_add_u32', 's31', f's{sT0}', f's{sT2}')
    a.salu('s_lshr_b32', 's32', f's{sT1}', 2)
    a.salu('s_lshr_b32', 's33', 's31', 1)
    a.salu('s_and_b32', 's34', 's31', 1)
    a.salu('s_mul_i32', f's{sT0}', 's30', 40)
    a.salu('s_add_u32', 's4', 's0', f's{sT0}')
    a.salu('s_addc_u32', 's5', 's1', 0)
    a.raw('s_load_dwordx2 s[40:41], s[4:5], 32', sw=[40, 41])
    a.raw('s_load_dwordx2 s[42:43], s[0:1], 80', sw=[42, 43])
    a.raw('s_load_dwordx2 s[44:45], s[0:1], 96', sw=[44, 45])
    vl, vg, vi, vr_, vc = vT[0], vT[1], vT[2], vT[3], vT[4]
    a.valu('v_lshrrev_b32', f'v{vT[5]}', 6, 'v0')
    a.readfirstlane(sWv, vT[5])
    a.valu('v_and_b32', f'v{vl}', 63, 'v0')
    a.valu('v_lshrrev_b32', f'v{vg}', 4, f'v{vl}')
    a.valu('v_and_b32', f'v{vi}', 15, f'v{vl}')
    a.valu('v_lshrrev_b32', f'v{vr_}', 2, f'v{vi}')
    a.valu('v_and_b32', f'v{vc}', 3, f'v{vi}')
    a.valu('v_lshlrev_b32', f'v{vLane16}', 4, f'v{vl}')
    a.salu('s_sub_u32', 's35', 7, 's34')
    a.salu('s_mul_i32', 's36', 's34', 7)
    a.wait(lgkm=0)
    a.salu('s_lshl_b32', f's{sT0}', 's32', 7)
    a.salu('s_add_u32', f's{sWo}', 's40', f's{sT0}'); a.salu('s_addc_u32', f's{sWo+1}', 's41', 0)
    a.salu('s_sub_u32', f's{sWo+2}', 4194304, f's{sT0}'); a.salu('s_mov_b32', f's{sWo+3}', 0x00020000)
    a.salu('s_lshl_b32', f's{sT0}', 's30', 3)
    a.salu('s_add_u32', f's{sT0}', f's{sT0}', 's33')
    a.salu('s_mul_i32', f's{sT0}', f's{sT0}', 13)
    a.salu('s_add_u32', f's{sT0}', f's{sT0}', 's36')
    a.salu('s_lshl_b32', f's{sT0}', f's{sT0}', 17)
    a.salu('s_add_u32', f's{sOs}', 's44', f's{sT0}'); a.salu('s_addc_u32', f's{sOs+1}', 's45', 0)
    a.salu('s_lshl_b32', f's{sOs+2}', 's35', 17); a.salu('s_mov_b32', f's{sOs+3}', 0x00020000)
    a.salu('s_mul_i32', f's{sT0}', 's33', 208)
    a.salu('s_lshl_b32', f's{sT1}', 's36', 4)
    a.salu('s_add_u32', f's{sT0}', f's{sT0}', f's{sT1}')
    a.salu('s_lshl_b32', f's{sT0}', f's{sT0}', 11)
    a.salu('s_lshl_b32', f's{sT1}', 's30', 10)
    a.salu('s_add_u32', f's{sT0}', f's{sT0}', f's{sT1}')
    a.salu('s_lshl_b32', f's{sT1}', 's32', 7)
    a.salu('s_add_u32', f's{sT0}', f's{sT0}', f's{sT1}')
    a.salu('s_add_u32', f's{sOut}', 's42', f's{sT0}'); a.salu('s_addc_u32', f's{sOut+1}', 's43', 0)
    a.salu('s_lshl_b32', f's{sT0}', 's35', 15)
    a.salu('s_sub_u32', f's{sOut+2}', f's{sT0}', 2048 - 128); a.salu('s_mov_b32', f's{sOut+3}', 0x00020000)
    a.valu('v_lshlrev_b32', f'v{vWD}', 1, f'v{vg}')
    a.valu('v_and_b32', f'v{vT[5]}', 7, f'v{vl}')
    a.valu('v_xor_b32', f'v{vWD}', f'v{vWD}', f'v{vT[5]}')
    a.valu('v_lshlrev_b32', f'v{vWD}', 4, f'v{vWD}')
    a.valu('v_lshrrev_b32', f'v{vT[5]}', 3, f'v{vl}')
    a.valu('v_lshl_add_u32', f'v{vWD}', f'v{vT[5]}', 10, f'v{vWD}')
    a.valu('v_and_b32', f'v{vT[5]}', 1, f'v{vg}')
    a.valu('v_lshlrev_b32', f'v{vT[5]}', 1, f'v{vT[5]}')
    a.valu('v_lshrrev_b32', f'v{vA[0]}', 1, f'v{vr_}')
    a.valu('v_or_b32', f'v{vT[5]}', f'v{vT[5]}', f'v{vA[0]}')
    a.valu('v_lshlrev_b32', f'v{vA[0]}', 5, f'v{vT[5]}')
    a.valu('v_lshl_add_u32', f'v{vA[0]}', f'v{vc}', 3, f'v{vA[0]}')
    a.valu('v_lshl_add_u32', f'v{vA[0]}', f'v{vr_}', 7, f'v{vA[0]}')
    a.valu('v_lshl_add_u32', f'v{vA[0]}', f'v{vg}', 9, f'v{vA[0]}')
    for nt in range(1, 4):
        a.valu('v_xor_b32', f'v{vA[nt]}', nt << 5, f'v{vA[0]}')
    a.valu('v_lshlrev_b32', f'v{vOO}', 11, f'v{vi}')
    a.valu('v_lshl_add_u32', f'v{vOO}', f'v{vg}', 4, f'v{vOO}')
    a.salu('s_lshl_b32', f's{sM0b}', f's{sWv}', 12)
    a.salu('s_lshl_b32', f's{sWoff}', f's{sWv}', 15)
    a.salu('s_lshl_b32', f's{sOoff[0]}', f's{sWv}', 18)
    a.salu('s_add_u32', f's{sOoff[1]}', f's{sOoff[0]}', 131072)

    def load_items(slot):
        L = []
        def wd(k):
            a.salu('s_add_u32', 'm0', f's{sM0b}', slot * 16384 + k * 1024)
            if k == 0:
                a.nop(0)
                a.buf_load_lds(vWD, sWo, sWoff, mods=WM)
            else:
                a.salu('s_add_u32', f's{sT0}', f's{sWoff}', k * 8192)
                a.buf_load_lds(vWD, sWo, sT0, mods=WM)
            if k == 3 and not now: a.salu('s_add_u32', f's{sWoff}', f's{sWoff}', 131072)
        def ol(ks, t):
            a.buf_load(OB(slot, ks, t), 4, vLane16, sOs, sOoff[t], offset=(0 if noo else ks * 1024), mods=('nt' if ont else ''))
            if ks == 3 and not noo: a.salu('s_add_u32', f's{sOoff[t]}', f's{sOoff[t]}', 4096)
        for k in range(4):
            L.append(lambda k=k: wd(k))
            L.append(lambda k=k: ol(k, 0))
            L.append(lambda k=k: ol(k, 1))
        return L

    if pf:
        a.scmp('s_cmp_eq_u32', f's{sWv}', 4)
        a.branch('s_cbranch_scc0', f'{name}_compute')
        a.salu('s_lshl_b32', f's{sOoff[0]}', 's32', 17)
        a.salu('s_lshr_b32', f's{sT0}', 's2', 3)
        a.salu('s_and_b32', f's{sT0}', f's{sT0}', 3)
        a.salu('s_lshl_b32', f's{sWoff}', f's{sT0}', 15)
        a.salu('s_add_u32', f's{sOoff[0]}', f's{sOoff[0]}', 3 * 4096)
        a.salu('s_add_u32', f's{sWoff}', f's{sWoff}', 3 * 131072)
        def pfstage(k):
            for i in range(4):
                a.buf_load((k % 4) * 32 + i * 4, 4, vLane16, sOs, sOoff[0], offset=i * 1024, mods=('nt' if ont else ''))
            for i in range(4):
                a.salu('s_add_u32', f's{sT0}', f's{sWoff}', i * 8192)
                a.buf_load((k % 4) * 32 + 16 + i * 4, 4, vWD, sWo, sT0, mods=WM)
            a.salu('s_add_u32', f's{sOoff[0]}', f's{sOoff[0]}', 4096)
            a.salu('s_add_u32', f's{sWoff}', f's{sWoff}', 131072)
        for k in range(pf - 3):
            pfstage(k)
            a.wait(vm=40)
        a.salu('s_mov_b32', f's{sCnt}', 0)
        a.label(f'{name}_pfloop')
        a.barrier()
        pfstage(0)
        a.wait(vm=40)
        a.salu('s_add_u32', f's{sCnt}', f's{sCnt}', 1)
        a.scmp('s_cmp_lt_u32', f's{sCnt}', 32 - pf)
        a.branch('s_cbranch_scc1', f'{name}_pfloop')
        a.label(f'{name}_pfloop2')
        a.barrier()
        a.salu('s_add_u32', f's{sCnt}', f's{sCnt}', 1)
        a.scmp('s_cmp_lt_u32', f's{sCnt}', 32)
        a.branch('s_cbranch_scc1', f'{name}_pfloop2')
        a.raw('s_endpgm')
        a.label(f'{name}_compute')
    for s in range(3):
        for f in load_items(s): f()
    for r in range(32): a.valu('v_mov_b32', f'v{r}', 0)

    def stage(slot, vmw, dma):
        a.wait(vm=vmw)
        a.barrier()
        L = load_items((slot + 3) % 4) if dma else []
        def rd(ks):
            for nt in range(4):
                f = F((ks & 1) * 4 + nt)
                a.ds_read('ds_read_b64_tr_b16', f, 2, vA[nt], slot * 16384 + ks * 4096)
                a.ds_read('ds_read_b64_tr_b16', f + 2, 2, vA[nt], slot * 16384 + ks * 4096 + 2048)
        rd(0)
        cnt = 0
        for ks in range(4):
            if ks < 3: rd(ks + 1)
            for nt in range(4):
                a.wait(lgkm=(8 if ks < 3 else 0) + 6 - 2 * nt)
                for t in range(2):
                    a.mfma16(ACC(t, nt), F((ks & 1) * 4 + nt), OB(slot, ks, t), ACC(t, nt))
                    cnt += 1
                    if L and cnt % 8 in (1, 4, 6): L.pop(0)()
        assert not L

    stamp()
    a.salu('s_mov_b32', f's{sCnt}', 0)
    a.label(f'{name}_loop')
    for j in range(4): stage(j, 24, True)
    a.salu('s_add_u32', f's{sCnt}', f's{sCnt}', 1)
    a.scmp('s_cmp_lt_u32', f's{sCnt}', 7)
    a.branch('s_cbranch_scc1', f'{name}_loop')
    stamp()
    stage(0, 24, True)
    stamp()
    stage(1, 24, False)
    stamp()
    stage(2, 12, False)
    stage(3, 0, False)
    stamp()
    a.nop(7)
    a.salu('s_lshl_b32', f's{sT0}', f's{sWv}', 16)
    for t in range(2):
        for p in range(2):
            A, B = ACC(t, 2 * p), ACC(t, 2 * p + 1)
            a.valu('v_cvt_pk_bf16_f32', f'v{A}', f'v{A}', f'v{A+1}')
            a.valu('v_cvt_pk_bf16_f32', f'v{A+1}', f'v{A+2}', f'v{A+3}')
            a.valu('v_cvt_pk_bf16_f32', f'v{A+2}', f'v{B}', f'v{B+1}')
            a.valu('v_cvt_pk_bf16_f32', f'v{A+3}', f'v{B+2}', f'v{B+3}')
            a.permswap('v_permlane32_swap_b32', A, A + 2)
            a.permswap('v_permlane32_swap_b32', A + 1, A + 3)
            a.permswap('v_permlane16_swap_b32', A, A + 2)
            a.permswap('v_permlane16_swap_b32', A + 1, A + 3)
            a.nop(1)
            a.buf_store(A, 4, vOO, sOut, sT0, offset=p * 64)
        if t == 0: a.salu('s_add_u32', f's{sT0}', f's{sT0}', 32768)
    stamp()
    dump_stamps()
    a.label(f'{name}_done')
    a.raw('s_endpgm')
    return a.text()
```

```python
import sys, importlib
sys.path.insert(0, 'gen')
from k1 import gen_k1
from k2 import gen_k2
NAME = 'concat_heads__mha_block_cached__mha_block_cached__near_ridge'
hdr = open('cdna_kernels/' + NAME + '.s.ref').read().split('; Override launch')[0]
def kd(name, vgpr, sgpr=102):
    return f'''.amdhsa_kernel {name}
  .amdhsa_next_free_vgpr {vgpr}
  .amdhsa_next_free_sgpr {sgpr}
  .amdhsa_accum_offset {(vgpr+3)//4*4}
  .amdhsa_group_segment_fixed_size 0
  .amdhsa_kernarg_size 104
  .amdhsa_user_sgpr_count 2
  .amdhsa_user_sgpr_kernarg_segment_ptr 1
  .amdhsa_system_sgpr_workgroup_id_x 1
.end_amdhsa_kernel
'''
def build(which=('k1', 'k2'), prof=None, **kw):
    K1 = NAME + '_kernel'; K2 = 'oproj_kernel'
    o = hdr
    k2b = 320 if kw.get('k2_pf', 0) else 256
    if 'k1' in which: o += f'; @launch kernel={K1} grid=(256,1,1) block=(512,1,1) lds=163840\n'
    if 'k2' in which: o += f'; @launch kernel={K2} grid=(256,1,1) block=({k2b},1,1) lds=65536\n'
    o += '.amdgcn_target "amdgcn-amd-amdhsa--gfx950"\n.text\n'
    o += f'.globl {K1}\n.p2align 8\n.type {K1},@function\n{K1}:\n' + gen_k1('k1', prof if 'k1' in which else None, **{k: v for k, v in kw.items() if not k.startswith('k2_')}) + '\n'
    o += f'.globl {K2}\n.p2align 8\n.type {K2},@function\n{K2}:\n' + gen_k2('k2', prof, **{k[3:]: v for k, v in kw.items() if k.startswith('k2_')}) + '\n'
    o += '.section .rodata,"a"\n.p2align 6\n' + kd(K1, 256) + '.p2align 6\n' + kd(K2, 208)
    return o
if __name__ == '__main__':
    out = sys.argv[1] if len(sys.argv) > 1 else 'cdna_kernels/' + NAME + '.s'
    which = sys.argv[2].split(',') if len(sys.argv) > 2 else ('k1', 'k2')
    prof = int(sys.argv[3]) if len(sys.argv) > 3 else None
    kw = dict((x.split('=')[0], int(x.split('=')[1])) for x in sys.argv[4:])
    if prof is not None and prof < 0: prof = None
    open(out, 'w').write(build(which, prof, **kw))
```
